```python
import torch

def _softmax(x, axis=-1):
    return torch.softmax(x, dim=axis)

def _gelu(x):
    return torch.nn.functional.gelu(x, approximate='tanh')

def _silu(x):
    return torch.nn.functional.silu(x)

def _sigmoid(x):
    return torch.sigmoid(x)

def _layernorm(x, axis=-1, eps=1e-05):
    m = x.mean(dim=axis, keepdim=True)
    v = x.var(dim=axis, keepdim=True, unbiased=False)
    return (x - m) / torch.sqrt(v + eps)

def _scatter_add(tgt, idx, src, axis=0):
    return tgt.clone().index_add_(axis, idx, src)

def _segment_sum(src, seg, n):
    out = torch.zeros((n,) + src.shape[1:], dtype=src.dtype)
    return out.index_add_(0, seg, src)

def _pad(x, pw):
    flat = tuple((v for pair in reversed(pw) for v in pair))
    return torch.nn.functional.pad(x, flat)
kernel_name = 'gated_mix__linear_kernel_hedgehog__mixer_gmlp__prompt'

def setup_inputs():

    _w = lambda a: (lambda t: t.to(torch.bfloat16) if t.is_floating_point() else t)(torch.as_tensor(a))

    def _A_setup():
        B, S, D, H = (1, 2048, 1024, 32)
        Dh = D // H
        return {'x': _w((lambda *s: torch.randn(*s, dtype=torch.bfloat16) * 0.05)(B, S, D)), 'wqkv': _w((lambda *s: torch.randn(*s, dtype=torch.bfloat16) * 1.6)(D, 3 * D)), 'w_phi': _w((lambda *s: torch.randn(*s, dtype=torch.bfloat16) * 1.6)(H, Dh, Dh) * Dh ** (-0.5)), 'wo': _w((lambda *s: torch.randn(*s, dtype=torch.bfloat16) * 0.1)(D, D))}
    _A_in = _A_setup()

    def _B_setup():
        B, S, D, F = (1, 2048, 1024, 3584)
        Fh = F // 2
        return {'x': _w((lambda *s: torch.randn(*s, dtype=torch.bfloat16) * 0.05)(B, S, D)), 'w_in': _w((lambda *s: torch.randn(*s, dtype=torch.bfloat16) * 0.4)(D, 2 * Fh)), 'w_sp': _w(0.01 * (lambda *s: torch.randn(*s, dtype=torch.bfloat16) * 0.4)(S, S)), 'b_sp': _w(1.0 + 0.01 * (lambda *s: torch.randn(*s, dtype=torch.bfloat16) * 0.05)(S)), 'w_out': _w((lambda *s: torch.randn(*s, dtype=torch.bfloat16) * 0.05)(Fh, D))}
    _B_in = _B_setup()
    return {'A_x': _A_in['x'], 'A_wqkv': _A_in['wqkv'], 'A_w_phi': _A_in['w_phi'], 'A_wo': _A_in['wo'], 'B_x': _B_in['x'], 'B_w_in': _B_in['w_in'], 'B_w_sp': _B_in['w_sp'], 'B_b_sp': _B_in['b_sp'], 'B_w_out': _B_in['w_out'], 'gate_w': _w((lambda *s: torch.randn(*s, dtype=torch.bfloat16) * 0.05)(1024) * 16.0)}

def reference(A_x, A_wqkv, A_w_phi, A_wo, B_x, B_w_in, B_w_sp, B_b_sp, B_w_out, gate_w):

    def _A_ref(x, wqkv, w_phi, wo):
        B, S, D = x.shape
        H = 32
        Dh = D // H
        qkv = (lambda x, *d: x.permute(*d))((x @ wqkv).reshape(B, S, 3, H, Dh), 2, 0, 3, 1, 4)
        q, k, v = (qkv[0], qkv[1], qkv[2])
        pq = torch.einsum('bhsd,hdf->bhsf', q, w_phi)
        pk = torch.einsum('bhsd,hdf->bhsf', k, w_phi)
        phi_q = torch.concatenate([_softmax(pq, axis=-1), _softmax(-pq, axis=-1)], axis=-1)
        phi_k = torch.concatenate([_softmax(pk, axis=-1), _softmax(-pk, axis=-1)], axis=-1)
        kv = torch.einsum('bhsf,bhsd->bhfd', phi_k, v)
        z = torch.einsum('bhsf->bhf', phi_k)
        num = torch.einsum('bhqf,bhfd->bhqd', phi_q, kv)
        den = torch.einsum('bhqf,bhf->bhq', phi_q, z)[..., None] + 1e-06
        o = num / den
        return (lambda x, *d: x.permute(*d))(o, 0, 2, 1, 3).reshape(B, S, D) @ wo

    def _B_ref(x, w_in, w_sp, b_sp, w_out):
        B, S, D = x.shape
        F = w_in.shape[-1]
        Fh = F // 2
        z = _gelu(torch.einsum('bsd,df->bsf', x, w_in))
        z1 = z[..., :Fh].clone()
        z2 = _layernorm(z[..., Fh:], axis=-1)
        g = torch.einsum('ts,bsf->btf', w_sp, z2) + b_sp[None, :, None]
        return torch.einsum('bsf,fd->bsd', z1 * g, w_out)
    x = A_x
    g = _sigmoid((x * gate_w).sum(-1, keepdims=True))
    a = _A_ref(x, A_wqkv, A_w_phi, A_wo)
    b = _B_ref(x, B_w_in, B_w_sp, B_b_sp, B_w_out)
    return g * a + (1 - g) * b
```

```python
class Asm:
    def __init__(self):
        self.lines = []
        self.nlabel = 0
    def __call__(self, s=""):
        for ln in s.split("\n"):
            self.lines.append(ln if (ln.strip().endswith(":") or not ln.strip()) else "  " + ln.strip())
    def label(self, name):
        self.lines.append(name + ":")
    def newlabel(self, stem="L"):
        self.nlabel += 1
        return f"{stem}_{self.nlabel}"
    def text(self):
        return "\n".join(self.lines) + "\n"


class Regs:
    def __init__(self, kind, start, limit):
        self.kind, self.next, self.limit, self.hi = kind, start, limit, start
        self.names = {}
    def alloc(self, n=1, align=None, name=None):
        if align is None:
            align = 1 if n == 1 else (2 if self.kind != 's' or n == 2 else 4)
            if self.kind == 's' and n >= 4: align = 4
        self.next = (self.next + align - 1) // align * align
        r = self.next
        self.next += n
        assert self.next <= self.limit, f"out of {self.kind} regs ({name})"
        self.hi = max(self.hi, self.next)
        if name: self.names[name] = (r, n)
        return r
    def mark(self): return self.next
    def release(self, mark): self.next = mark


def rr(kind, base, n=1):
    return f"{kind}{base}" if n == 1 else f"{kind}[{base}:{base+n-1}]"
def v(base, n=1): return rr('v', base, n)
def a(base, n=1): return rr('a', base, n)
def s(base, n=1): return rr('s', base, n)


def kernel_header(name):
    return f""".text
.globl {name}
.p2align 8
.type {name},@function
{name}:
"""

def kernel_desc(name, nvgpr, nagpr, nsgpr, wg_y=False):
    acc = (max(nvgpr, 4) + 3) // 4 * 4
    nfv = acc + nagpr if nagpr else nvgpr
    return f""".section .rodata,"a"
.p2align 6
.amdhsa_kernel {name}
  .amdhsa_next_free_vgpr {nfv}
  .amdhsa_next_free_sgpr {nsgpr}
  .amdhsa_accum_offset {acc}
  .amdhsa_group_segment_fixed_size 0
  .amdhsa_kernarg_size 104
  .amdhsa_user_sgpr_count 2
  .amdhsa_user_sgpr_kernarg_segment_ptr 1
  .amdhsa_system_sgpr_workgroup_id_x 1
  .amdhsa_float_denorm_mode_32 3
.end_amdhsa_kernel
.text
"""
```

```python
from asmlib import *
import math, struct

MB = 1 << 20
WS_Z2N  = 0
WS_STATS = 8 * MB
WS_KVP  = 9 * MB
WS_ZP   = 13 * MB
WS_KVR  = 14 * MB
WS_ZR   = 14 * MB + 128 * 1024
WS_GATE = 14 * MB + 256 * 1024
WS_OH   = 16 * MB
WS_TS   = 28 * MB
WS_END  = 32 * MB
OH_STRIDE = 2816 * 2

def f2u(x): return struct.unpack("<I", struct.pack("<f", x))[0]
LOG2E = 1.4426950408889634
GELU_C1 = -2.0 * LOG2E * math.sqrt(2.0 / math.pi)
GELU_C2 = GELU_C1 * 0.044715

ARG = dict(x=0, wqkv=8, wphi=16, wo=24, bx=32, win=40, wsp=48, bsp=56, wout=64, gatew=72, out=80, dbg=88, ws=96)

class K:
    def __init__(self, A, name):
        self.A, self.name = A, name
        self.V = Regs('v', 1, 256)
        self.S = Regs('s', 3, 100)
        self.ptr = {}
    def begin(self, nwg, ptrs):
        A, S, V = self.A, self.S, self.V
        A.lines.append(kernel_header(self.name))
        self.end = f"{self.name}_end"
        A(f"s_cmp_ge_u32 s2, {nwg}")
        A(f"s_cbranch_scc1 {self.end}")
        for p in ptrs:
            r = S.alloc(2, 2); self.ptr[p] = r
            A(f"s_load_dwordx2 {s(r,2)}, s[0:1], {ARG[p]}")
        self.vlane = V.alloc(); self.swave = S.alloc(); self.st = S.alloc(); self.st2 = S.alloc()
        self.t = [V.alloc() for _ in range(8)]
        A(f"v_lshrrev_b32 {v(self.t[0])}, 6, v0")
        A(f"v_and_b32 {v(self.vlane)}, 63, v0")
        A(f"v_readfirstlane_b32 {s(self.swave)}, {v(self.t[0])}")
    def waitargs(self):
        self.A("s_waitcnt lgkmcnt(0)")
    def srd(self, p, nbytes, off=0, reg=None):
        A = self.A
        r = reg if reg is not None else self.S.alloc(4, 4)
        b = self.ptr[p]
        if off:
            A(f"s_add_u32 {s(r)}, {s(b)}, {off}")
            A(f"s_addc_u32 {s(r+1)}, {s(b+1)}, 0")
            A(f"s_and_b32 {s(r+1)}, {s(r+1)}, 0xffff")
        else:
            A(f"s_mov_b32 {s(r)}, {s(b)}")
            A(f"s_and_b32 {s(r+1)}, {s(b+1)}, 0xffff")
        A(f"s_mov_b32 {s(r+2)}, {nbytes}")
        A(f"s_mov_b32 {s(r+3)}, 0x20000")
        return r
    def finish(self):
        A = self.A
        A.label(self.end)
        A("s_endpgm")
        A.lines.append(kernel_desc(self.name, self.V.hi, 0, max(self.S.hi, 16)))

def emit_xreduce(A, op, t0, t1, full=True):
    A(f"v_permlane16_swap_b32 {v(t0)}, {v(t1)}")
    A(f"{op} {v(t0)}, {v(t0)}, {v(t1)}")
    A(f"v_mov_b32 {v(t1)}, {v(t0)}")
    A(f"v_permlane32_swap_b32 {v(t0)}, {v(t1)}")
    A(f"{op} {v(t0)}, {v(t0)}, {v(t1)}")
    if full:
        A(f"v_mov_b32 {v(t1)}, {v(t0)}")
        A(f"v_permlane16_swap_b32 {v(t0)}, {v(t1)}")

def emit_phi(A, p, opos, oneg, e, t0, t1, sL, sNL):
    P = lambda i: v(p + i)
    A(f"v_max3_f32 {v(t0)}, {P(0)}, {P(1)}, {P(2)}")
    A(f"v_max3_f32 {v(t1)}, -{P(0)}, -{P(1)}, -{P(2)}")
    A(f"v_max3_f32 {v(t0)}, {v(t0)}, {P(3)}, {P(4)}")
    A(f"v_max3_f32 {v(t1)}, {v(t1)}, -{P(3)}, -{P(4)}")
    A(f"v_max3_f32 {v(t0)}, {v(t0)}, {P(5)}, {P(6)}")
    A(f"v_max3_f32 {v(t1)}, {v(t1)}, -{P(5)}, -{P(6)}")
    A(f"v_max_f32 {v(t0)}, {v(t0)}, {P(7)}")
    A(f"v_max_f32 {v(t1)}, {v(t1)}, -{P(7)}")
    emit_xreduce(A, "v_max_f32", t0, t1)
    A(f"v_mul_f32 {v(t0)}, {s(sNL)}, {v(t0)}")
    A(f"v_mul_f32 {v(t1)}, {s(sNL)}, {v(t1)}")
    for i in range(8):
        A(f"v_fma_f32 {v(e+i)}, {P(i)}, {s(sL)}, {v(t0)}")
        A(f"v_fma_f32 {v(e+8+i)}, -{P(i)}, {s(sL)}, {v(t1)}")
    for i in range(16):
        A(f"v_exp_f32 {v(e+i)}, {v(e+i)}")
    A(f"v_pk_add_f32 {v(p,2)}, {v(e,2)}, {v(e+2,2)}")
    A(f"v_pk_add_f32 {v(p+2,2)}, {v(e+8,2)}, {v(e+10,2)}")
    A(f"v_pk_add_f32 {v(p+4,2)}, {v(e+4,2)}, {v(e+6,2)}")
    A(f"v_pk_add_f32 {v(p+6,2)}, {v(e+12,2)}, {v(e+14,2)}")
    A(f"v_pk_add_f32 {v(p,2)}, {v(p,2)}, {v(p+4,2)}")
    A(f"v_pk_add_f32 {v(p+2,2)}, {v(p+2,2)}, {v(p+6,2)}")
    A(f"v_add_f32 {v(t0)}, {v(p)}, {v(p+1)}")
    A(f"v_add_f32 {v(t1)}, {v(p+2)}, {v(p+3)}")
    emit_xreduce(A, "v_add_f32", t0, t1)
    A(f"v_rcp_f32 {v(t0)}, {v(t0)}")
    A(f"v_rcp_f32 {v(t1)}, {v(t1)}")
    for i in range(8):
        A(f"v_mul_f32 {v(e+i)}, {v(e+i)}, {v(t0)}")
        A(f"v_mul_f32 {v(e+8+i)}, {v(e+8+i)}, {v(t1)}")
    for i in range(4):
        A(f"v_cvt_pk_bf16_f32 {v(opos+i)}, {v(e+2*i)}, {v(e+2*i+1)}")
        A(f"v_cvt_pk_bf16_f32 {v(oneg+i)}, {v(e+8+2*i)}, {v(e+8+2*i+1)}")

def emit_gelu(A, regs, tmp, vc2):
    n = len(regs)
    for r, t in zip(regs, tmp): A(f"v_mul_f32 {v(t)}, {v(r)}, {v(r)}")
    for r, t in zip(regs, tmp): A(f"v_fmaak_f32 {v(t)}, {v(vc2)}, {v(t)}, {hex(f2u(GELU_C1))}")
    for r, t in zip(regs, tmp): A(f"v_mul_f32 {v(t)}, {v(r)}, {v(t)}")
    for r, t in zip(regs, tmp): A(f"v_exp_f32 {v(t)}, {v(t)}")
    for r, t in zip(regs, tmp): A(f"v_add_f32 {v(t)}, 1.0, {v(t)}")
    for r, t in zip(regs, tmp): A(f"v_rcp_f32 {v(t)}, {v(t)}")
    for r, t in zip(regs, tmp): A(f"v_mul_f32 {v(r)}, {v(r)}, {v(t)}")

def mfma16(A, d, a_, b_, c=None):
    A(f"v_mfma_f32_16x16x32_bf16 {v(d,4)}, {v(a_,4)}, {v(b_,4)}, {'0' if c is None else v(c,4)}")

def emit_load_wphi(A, k, dst, s_base, t0, t1):
    vl = k.vlane
    A(f"v_lshrrev_b32 {v(t0)}, 4, {v(vl)}")
    A(f"v_lshlrev_b32 {v(t0)}, 2, {v(t0)}")
    A(f"v_bfe_u32 {v(t1)}, {v(vl)}, 2, 2")
    A(f"v_add_u32 {v(t0)}, {v(t0)}, {v(t1)}")
    A(f"v_lshlrev_b32 {v(t0)}, 6, {v(t0)}")
    A(f"v_and_b32 {v(t1)}, 3, {v(vl)}")
    A(f"v_lshl_add_u32 {v(t0)}, {v(t1)}, 3, {v(t0)}")
    A(f"v_add_u32 {v(t0)}, {s(s_base)}, {v(t0)}")
    for fb in range(2):
        for u in range(2):
            A(f"ds_read_b64_tr_b16 {v(dst+4*fb+2*u,2)}, {v(t0)} offset:{fb*32 + u*1024}")
```

```python
from common import *
from phase import *

def gen_k1(A, name="k1_kernel"):
    k = K(A, name)
    V, S = k.V, k.S
    k.begin(256, ['x', 'wqkv', 'wphi', 'win', 'gatew', 'ws'])
    t = k.t; st = k.st; vl = k.vlane; sw = k.swave
    s_tb, s_ct, s_row0, s_wm, s_wn = (S.alloc() for _ in range(5))
    A(f"s_and_b32 {s(st)}, s2, 1")
    A(f"s_lshl_b32 {s(s_tb)}, {s(st)}, 3")
    A(f"s_bfe_u32 {s(st)}, s2, 0x30003")
    A(f"s_add_u32 {s(s_tb)}, {s(s_tb)}, {s(st)}")
    A(f"s_bfe_u32 {s(st)}, s2, 0x20001")
    A(f"s_lshl_b32 {s(s_ct)}, {s(st)}, 2")
    A(f"s_lshr_b32 {s(st)}, s2, 6")
    A(f"s_add_u32 {s(s_ct)}, {s(s_ct)}, {s(st)}")
    A(f"s_lshl_b32 {s(s_row0)}, {s(s_tb)}, 7")
    A(f"s_and_b32 {s(s_wm)}, {s(sw)}, 1")
    A(f"s_lshr_b32 {s(s_wn)}, {s(sw)}, 1")
    k.waitargs()
    srd_x = k.srd('x', 2048*1024*2)
    srd_w = S.alloc(4, 4)
    srd_ws = k.srd('ws', WS_END)
    A(f"s_cmp_eq_u32 {s(s_ct)}, 15")
    A(f"s_cbranch_scc1 {name}_aux")

    PW = Panel('w', 512, 49152, 3)
    ph = Phase(A, V, S, 't1', 3, 4, 2, [PW])
    ph.alloc(4)
    for fb in range(4): ph.alloc_wa(fb, PW)
    PHI = 147456
    ph.setup_m0(sw)
    ph.setup_x_dma(vl, sw, s_row0, 2048, t[0], t[1], st)
    ph.setup_x_read(vl, s_wm, None, t[0], t[1], t[2], st)
    s_ch = S.alloc()
    for fb in range(4):
        A(f"s_lshl_b32 {s(s_ch)}, {s(s_wn)}, 2")
        if fb: A(f"s_add_u32 {s(s_ch)}, {s(s_ch)}, {fb}")
        ph.setup_w_read(fb, vl, None, s_ch, t, st)
    A(f"s_mov_b32 {s(ph.sx_off)}, 0")
    A(f"s_mov_b32 {s(PW.s_off)}, 0")
    free = ph.xf[0][0]
    assert ph.wf[1][3] + 4 == free + 64
    A(f"s_cmp_ge_u32 {s(s_ct)}, 8")
    A(f"s_cbranch_scc1 {name}_z2")

    k.srd('wqkv', 1024*3072*2, reg=srd_w)
    srd_phi = k.srd('wphi', 32*32*32*2)
    s_h0 = S.alloc()
    A(f"s_lshl_b32 {s(s_h0)}, {s(s_ct)}, 2")
    def cm_kv(vd, vq):
        A(f"v_lshrrev_b32 {v(vd)}, 2, {v(vq)}")
        A(f"v_add_u32 {v(vd)}, {s(s_h0)}, {v(vd)}")
        A(f"v_lshlrev_b32 {v(vd)}, 6, {v(vd)}")
        A(f"v_and_b32 {v(t[5])}, 1, {v(vq)}")
        A(f"v_lshl_add_u32 {v(vd)}, {v(t[5])}, 5, {v(vd)}")
        A(f"v_bfe_u32 {v(t[5])}, {v(vq)}, 1, 1")
        A(f"v_lshl_add_u32 {v(vd)}, {v(t[5])}, 11, {v(vd)}")
        A(f"v_add_u32 {v(vd)}, 2048, {v(vd)}")
    ph.setup_w_dma(PW, vl, sw, 6144, cm_kv, t, st)
    A(f"s_lshl_b32 {s(st)}, {s(sw)}, 10")
    A(f"s_add_u32 m0, {s(st)}, {PHI}")
    A(f"s_lshl_b32 {s(k.st2)}, {s(s_ct)}, 13")
    A(f"s_add_u32 {s(st)}, {s(st)}, {s(k.st2)}")
    A(f"v_lshlrev_b32 {v(t[0])}, 4, {v(vl)}")
    A(f"buffer_load_dwordx4 {v(t[0])}, {s(srd_phi,4)}, {s(st)} offen lds")
    src = lambda stg: dict(x=(srd_x, 128), w=(srd_w, 64*6144))
    ph.prologue_dma(16, src)
    ph.swapf = lambda fb: fb >= 2
    ph.mainloop(16, src, 4)
    ph.swapf = None
    mark = V.mark()
    WPH = V.alloc(8, 4); ID = V.alloc(6, 2); ONES = V.alloc(4, 4)
    KV = V.alloc(32, 4); Z = V.alloc(16, 4)
    f = free
    Kop = f; P = f + 4; E = f + 12; AP = f + 28; AN = f + 32; D3 = f + 36;
    PhiOp = f + 52
    PhiOp = V.alloc(16, 4); Vop = V.alloc(8, 4)
    t0, t1 = f + 52, f + 53
    sL, sNL = S.alloc(), S.alloc()
    A(f"s_mov_b32 {s(sL)}, {hex(f2u(LOG2E))}")
    A(f"s_mov_b32 {s(sNL)}, {hex(f2u(-LOG2E))}")
    A(f"s_lshl_b32 {s(st)}, {s(s_wn)}, 11")
    A(f"s_add_u32 {s(st)}, {s(st)}, {PHI}")
    emit_load_wphi(A, k, WPH, st, t[0], t[1])
    A(f"v_and_b32 {v(t[0])}, 15, {v(vl)}")
    A(f"v_lshrrev_b32 {v(t[1])}, 4, {v(vl)}")
    A(f"v_lshlrev_b32 {v(t[1])}, 2, {v(t[1])}")
    A(f"v_sub_u32 {v(t[0])}, {v(t[0])}, {v(t[1])}")
    A(f"v_mov_b32 {v(t[2])}, 0x3f80")
    A(f"v_mov_b32 {v(t[3])}, 0x3f800000")
    A(f"v_mov_b32 {v(ID+0)}, 0"); A(f"v_mov_b32 {v(ID+1)}, 0"); A(f"v_mov_b32 {v(ID+4)}, 0"); A(f"v_mov_b32 {v(ID+5)}, 0")
    for r, e0 in ((ID+2, 0), (ID+3, 2)):
        A(f"v_cmp_eq_u32 vcc, {e0}, {v(t[0])}")
        A(f"v_cndmask_b32 {v(r)}, 0, {v(t[2])}, vcc")
        A(f"v_cmp_eq_u32 vcc, {e0+1}, {v(t[0])}")
        A(f"v_cndmask_b32 {v(r)}, {v(r)}, {v(t[3])}, vcc")
    for i in range(4): A(f"v_mov_b32 {v(ONES+i)}, 0x3f803f80")
    A("s_waitcnt lgkmcnt(0)")
    I0, I1 = ID + 2, ID
    for tp in range(2):
        for h in range(2):
            tb = 2*tp + h
            a0, a1 = ph.accb(tb, 0), ph.accb(tb, 1)
            A(f"v_cvt_pk_bf16_f32 {v(Kop)}, {v(a0)}, {v(a0+1)}")
            A(f"v_cvt_pk_bf16_f32 {v(Kop+1)}, {v(a0+2)}, {v(a0+3)}")
            A(f"v_cvt_pk_bf16_f32 {v(Kop+2)}, {v(a1)}, {v(a1+1)}")
            A(f"v_cvt_pk_bf16_f32 {v(Kop+3)}, {v(a1+2)}, {v(a1+3)}")
            mfma16(A, P, WPH, Kop); mfma16(A, P+4, WPH+4, Kop)
            for db in range(2):
                b = ph.accb(tb, 2+db)
                A(f"v_cvt_pk_bf16_f32 {v(Vop+4*db+2*h)}, {v(b)}, {v(b+1)}")
                A(f"v_cvt_pk_bf16_f32 {v(Vop+4*db+2*h+1)}, {v(b+2)}, {v(b+3)}")
            emit_phi(A, P, AP, AN, E, t0, t1, sL, sNL)
            mfma16(A, D3, AP, I0); mfma16(A, D3+4, AP, I1); mfma16(A, D3+8, AN, I0); mfma16(A, D3+12, AN, I1)
            for b in range(4):
                A(f"v_cvt_pk_bf16_f32 {v(PhiOp+4*b+2*h)}, {v(D3+4*b)}, {v(D3+4*b+1)}")
                A(f"v_cvt_pk_bf16_f32 {v(PhiOp+4*b+2*h+1)}, {v(D3+4*b+2)}, {v(D3+4*b+3)}")
        for b in range(4):
            for db in range(2):
                d = KV + (b*2+db)*4
                mfma16(A, d, PhiOp+4*b, Vop+4*db, None if tp == 0 else d)
            mfma16(A, Z+4*b, PhiOp+4*b, ONES, None if tp == 0 else Z+4*b)
    A("s_barrier")
    vad = t[0]
    A(f"s_xor_b32 {s(st)}, {s(sw)}, 1")
    A(f"s_mul_i32 {s(st)}, {s(st)}, 6144")
    A(f"v_lshlrev_b32 {v(vad)}, 4, {v(vl)}")
    A(f"v_add_u32 {v(vad)}, {s(st)}, {v(vad)}")
    A(f"s_cmp_eq_u32 {s(s_wm)}, 0")
    A(f"s_cbranch_scc0 {name}_kvs1")
    for g_ in range(4): A(f"ds_write_b128 {v(vad)}, {v(KV+16+4*g_,4)} offset:{g_*1024}")
    for g_ in range(2): A(f"ds_write_b128 {v(vad)}, {v(Z+8+4*g_,4)} offset:{(4+g_)*1024}")
    A(f"s_branch {name}_kvs2")
    A.label(f"{name}_kvs1")
    for g_ in range(4): A(f"ds_write_b128 {v(vad)}, {v(KV+4*g_,4)} offset:{g_*1024}")
    for g_ in range(2): A(f"ds_write_b128 {v(vad)}, {v(Z+4*g_,4)} offset:{(4+g_)*1024}")
    for i in range(16): A(f"v_mov_b32 {v(KV+i)}, {v(KV+16+i)}")
    for i in range(8): A(f"v_mov_b32 {v(Z+i)}, {v(Z+8+i)}")
    A.label(f"{name}_kvs2")
    A("s_waitcnt lgkmcnt(0)")
    A("s_barrier")
    A(f"s_mul_i32 {s(st)}, {s(sw)}, 6144")
    A(f"v_lshlrev_b32 {v(vad)}, 4, {v(vl)}")
    A(f"v_add_u32 {v(vad)}, {s(st)}, {v(vad)}")
    for g_ in range(4): A(f"ds_read_b128 {v(KV+16+4*g_,4)}, {v(vad)} offset:{g_*1024}")
    for g_ in range(2): A(f"ds_read_b128 {v(Z+8+4*g_,4)}, {v(vad)} offset:{(4+g_)*1024}")
    A("s_waitcnt lgkmcnt(0)")
    for i in range(16): A(f"v_add_f32 {v(KV+i)}, {v(KV+i)}, {v(KV+16+i)}")
    for i in range(8): A(f"v_add_f32 {v(Z+i)}, {v(Z+i)}, {v(Z+8+i)}")
    s_rec = S.alloc()
    A(f"s_add_u32 {s(s_rec)}, {s(s_h0)}, {s(s_wn)}")
    A(f"s_lshl_b32 {s(s_rec)}, {s(s_rec)}, 4")
    A(f"s_add_u32 {s(s_rec)}, {s(s_rec)}, {s(s_tb)}")
    A(f"s_lshl_b32 {s(st)}, {s(s_rec)}, 13")
    A(f"s_lshl_b32 {s(k.st2)}, {s(s_wm)}, 12")
    A(f"s_add_u32 {s(st)}, {s(st)}, {s(k.st2)}")
    A(f"s_add_u32 {s(st)}, {s(st)}, {WS_KVP}")
    A(f"v_lshlrev_b32 {v(vad)}, 4, {v(vl)}")
    for g_ in range(4):
        A(f"buffer_store_dwordx4 {v(KV+4*g_,4)}, {v(vad)}, {s(srd_ws,4)}, {s(st)} offen offset:{g_*1024}")
    A(f"s_lshl_b32 {s(st)}, {s(s_rec)}, 8")
    A(f"s_lshl_b32 {s(k.st2)}, {s(s_wm)}, 7")
    A(f"s_add_u32 {s(st)}, {s(st)}, {s(k.st2)}")
    A(f"s_add_u32 {s(st)}, {s(st)}, {WS_ZP}")
    A(f"v_and_b32 {v(vad)}, 0x30, {v(vl)}")
    A("s_mov_b32 exec_lo, 0x00010001"); A("s_mov_b32 exec_hi, 0x00010001")
    for g_ in range(2):
        A(f"buffer_store_dwordx4 {v(Z+4*g_,4)}, {v(vad)}, {s(srd_ws,4)}, {s(st)} offen offset:{g_*64}")
    A("s_mov_b64 exec, -1")
    A("s_endpgm")
    V.release(mark)

    A.label(f"{name}_z2")
    k.srd('win', 1024*3584*2, reg=srd_w)
    s_c0 = S.alloc()
    s_zt = S.alloc()
    A(f"s_sub_u32 {s(s_zt)}, {s(s_ct)}, 8")
    A(f"s_lshl_b32 {s(s_c0)}, {s(s_zt)}, 9")
    A(f"s_add_u32 {s(s_c0)}, {s(s_c0)}, {1792*2}")
    def cm_z2(vd, vq):
        A(f"v_lshlrev_b32 {v(vd)}, 5, {v(vq)}")
        A(f"v_add_u32 {v(vd)}, {s(s_c0)}, {v(vd)}")
    ph.setup_w_dma(PW, vl, sw, 7168, cm_z2, t, st)
    src = lambda stg: dict(x=(srd_x, 128), w=(srd_w, 64*7168))
    ph.prologue_dma(16, src)
    ph.mainloop(16, src, 4)
    mark = V.mark()
    vc2 = V.alloc(); sum1 = V.alloc(2, 2); sum2 = V.alloc(2, 2); PK = V.alloc(4, 4)
    va = [V.alloc(), V.alloc()]; vst = V.alloc()
    A(f"v_mov_b32 {v(vc2)}, {hex(f2u(GELU_C2))}")
    for pr in range(2):
        A(f"s_lshl_b32 {s(st)}, {s(s_zt)}, 8")
        A(f"s_lshl_b32 {s(k.st2)}, {s(s_wn)}, 6")
        A(f"s_add_u32 {s(st)}, {s(st)}, {s(k.st2)}")
        if pr: A(f"s_add_u32 {s(st)}, {s(st)}, 32")
        A(f"v_bfe_u32 {v(t[0])}, {v(vl)}, 4, 1")
        A(f"v_lshrrev_b32 {v(t[1])}, 5, {v(vl)}")
        A(f"v_lshlrev_b32 {v(t[1])}, 3, {v(t[1])}")
        A(f"v_lshl_add_u32 {v(t[0])}, {v(t[0])}, 4, {v(t[1])}")
        A(f"v_add_u32 {v(t[0])}, {s(st)}, {v(t[0])}")
        A(f"v_lshrrev_b32 {v(t[1])}, 3, {v(t[0])}")
        A(f"v_mul_u32_u24 {v(t[1])}, 4682, {v(t[1])}")
        A(f"v_lshrrev_b32 {v(t[1])}, 16, {v(t[1])}")
        A(f"v_mul_u32_u24 {v(t[2])}, 112, {v(t[1])}")
        A(f"v_sub_u32 {v(t[0])}, {v(t[0])}, {v(t[2])}")
        A(f"v_lshlrev_b32 {v(t[0])}, 1, {v(t[0])}")
        A(f"v_lshl_add_u32 {v(t[0])}, {v(t[1])}, 19, {v(t[0])}")
        A(f"s_lshl_b32 {s(st)}, {s(s_wm)}, 6")
        A(f"s_add_u32 {s(st)}, {s(st)}, {s(s_row0)}")
        A(f"v_and_b32 {v(t[1])}, 15, {v(vl)}")
        A(f"v_add_u32 {v(t[1])}, {s(st)}, {v(t[1])}")
        A(f"v_lshl_add_u32 {v(va[pr])}, {v(t[1])}, 8, {v(t[0])}")
    ST = PHI
    A(f"s_lshl_b32 {s(st)}, {s(s_wn)}, 7")
    A(f"s_lshl_b32 {s(k.st2)}, {s(s_wm)}, 6")
    A(f"s_add_u32 {s(st)}, {s(st)}, {s(k.st2)}")
    A(f"v_and_b32 {v(t[0])}, 15, {v(vl)}")
    A(f"v_add_u32 {v(t[0])}, {s(st)}, {v(t[0])}")
    A(f"v_lshlrev_b32 {v(t[0])}, 1, {v(t[0])}")
    A(f"v_bfe_u32 {v(t[1])}, {v(vl)}, 4, 1")
    A(f"v_add_u32 {v(t[0])}, {v(t[0])}, {v(t[1])}")
    A(f"v_lshlrev_b32 {v(t[0])}, 2, {v(t[0])}")
    A(f"v_add_u32 {v(vst)}, {ST}, {v(t[0])}")
    for tb in range(4):
        regs_ = [ph.accb(tb, 0) + i for i in range(16)]
        emit_gelu(A, regs_, [free + i for i in range(16)], vc2)
        b = regs_[0]
        A(f"v_pk_add_f32 {v(sum1,2)}, {v(b,2)}, {v(b+2,2)}")
        A(f"v_pk_mul_f32 {v(sum2,2)}, {v(b,2)}, {v(b,2)}")
        for i in range(2, 16, 2):
            if i > 2: A(f"v_pk_add_f32 {v(sum1,2)}, {v(sum1,2)}, {v(b+i,2)}")
            A(f"v_pk_fma_f32 {v(sum2,2)}, {v(b+i,2)}, {v(b+i,2)}, {v(sum2,2)}")
        A(f"v_add_f32 {v(sum1)}, {v(sum1)}, {v(sum1+1)}")
        A(f"v_add_f32 {v(sum2)}, {v(sum2)}, {v(sum2+1)}")
        emit_xreduce(A, "v_add_f32", sum1, sum2, full=False)
        A(f"ds_write_b32 {v(vst)}, {v(sum1)} offset:{tb*128}")
        A(f"s_mov_b32 {s(st)}, {WS_Z2N + tb*4096}")
        for pr in range(2):
            b0, b1 = ph.accb(tb, 2*pr), ph.accb(tb, 2*pr+1)
            A(f"v_cvt_pk_bf16_f32 {v(PK)}, {v(b0)}, {v(b0+1)}")
            A(f"v_cvt_pk_bf16_f32 {v(PK+1)}, {v(b0+2)}, {v(b0+3)}")
            A(f"v_cvt_pk_bf16_f32 {v(PK+2)}, {v(b1)}, {v(b1+1)}")
            A(f"v_cvt_pk_bf16_f32 {v(PK+3)}, {v(b1+2)}, {v(b1+3)}")
            A(f"v_permlane16_swap_b32 {v(PK)}, {v(PK+2)}")
            A(f"v_permlane16_swap_b32 {v(PK+1)}, {v(PK+3)}")
            A(f"buffer_store_dwordx4 {v(PK,4)}, {v(va[pr])}, {s(srd_ws,4)}, {s(st)} offen")
    A("s_waitcnt lgkmcnt(0)")
    A("s_barrier")
    A(f"s_cmp_ge_u32 {s(sw)}, 2")
    A(f"s_cbranch_scc1 {k.end}")
    A(f"s_lshl_b32 {s(st)}, {s(sw)}, 6")
    A(f"v_add_u32 {v(t[0])}, {s(st)}, {v(vl)}")
    A(f"v_lshlrev_b32 {v(t[0])}, 3, {v(t[0])}")
    A(f"v_add_u32 {v(t[1])}, {ST}, {v(t[0])}")
    for w in range(4):
        A(f"ds_read_b64 {v(free+2*w,2)}, {v(t[1])} offset:{w*1024}")
    A("s_waitcnt lgkmcnt(0)")
    A(f"v_pk_add_f32 {v(free,2)}, {v(free,2)}, {v(free+2,2)}")
    A(f"v_pk_add_f32 {v(free+4,2)}, {v(free+4,2)}, {v(free+6,2)}")
    A(f"v_pk_add_f32 {v(free,2)}, {v(free,2)}, {v(free+4,2)}")
    A(f"s_mul_i32 {s(st)}, {s(s_tb)}, 7")
    A(f"s_add_u32 {s(st)}, {s(st)}, {s(s_zt)}")
    A(f"s_lshl_b32 {s(st)}, {s(st)}, 10")
    A(f"s_add_u32 {s(st)}, {s(st)}, {WS_STATS}")
    A(f"buffer_store_dwordx2 {v(free,2)}, {v(t[0])}, {s(srd_ws,4)}, {s(st)} offen")
    A("s_endpgm")
    V.release(mark)

    A.label(f"{name}_aux")
    srd_g = k.srd('gatew', 2048)
    mark = V.mark()
    XB = ph.acc; GB = free; D = V.alloc(4, 4)
    A(f"s_lshl_b32 {s(st)}, {s(sw)}, 4")
    A(f"s_add_u32 {s(st)}, {s(st)}, {s(s_row0)}")
    A(f"v_and_b32 {v(t[0])}, 15, {v(vl)}")
    A(f"v_add_u32 {v(t[0])}, {s(st)}, {v(t[0])}")
    A(f"v_and_b32 {v(t[2])}, 0x30, {v(vl)}")
    A(f"v_lshl_add_u32 {v(t[1])}, {v(t[0])}, 11, {v(t[2])}")
    for half in range(2):
        for i in range(16):
            A(f"buffer_load_dwordx4 {v(XB+4*i,4)}, {v(t[1])}, {s(srd_x,4)}, 0 offen offset:{(half*16+i)*64}")
            A(f"buffer_load_dwordx4 {v(GB+4*i,4)}, {v(t[2])}, {s(srd_g,4)}, 0 offen offset:{(half*16+i)*64}")
        A("s_waitcnt vmcnt(0)")
        for i in range(16):
            mfma16(A, D, GB+4*i, XB+4*i, None if (half == 0 and i == 0) else D)
    A(f"v_mul_f32 {v(t[3])}, {hex(f2u(-LOG2E))}, {v(D)}")
    A(f"v_exp_f32 {v(t[3])}, {v(t[3])}")
    A(f"v_add_f32 {v(t[3])}, 1.0, {v(t[3])}")
    A(f"v_rcp_f32 {v(t[3])}, {v(t[3])}")
    A(f"v_lshlrev_b32 {v(t[0])}, 2, {v(t[0])}")
    A(f"s_mov_b32 {s(st)}, {WS_GATE}")
    A("s_mov_b32 exec_lo, 0x0000ffff"); A("s_mov_b32 exec_hi, 0")
    A(f"buffer_store_dword {v(t[3])}, {v(t[0])}, {s(srd_ws,4)}, {s(st)} offen")
    A("s_mov_b64 exec, -1")
    V.release(mark)
    k.finish()
    return dict(lds=155648, vgpr=V.hi, sgpr=S.hi)
```

```python
from common import *

def gen_k2(A, name="k2_kernel"):
    k = K(A, name)
    V, S = k.V, k.S
    k.begin(256, ['ws'])
    t = k.t; st = k.st; vl = k.vlane; sw = k.swave
    k.waitargs()
    srd = k.srd('ws', WS_END)
    vrow = V.alloc(); vl32 = V.alloc()
    ST = V.alloc(14, 2); D = V.alloc(28, 4); va = [V.alloc() for _ in range(7)]
    mean, rstd = V.alloc(), V.alloc()
    A(f"s_lshl_b32 {s(st)}, s2, 3")
    A(f"v_lshrrev_b32 {v(vrow)}, 5, v0")
    A(f"v_add_u32 {v(vrow)}, {s(st)}, {v(vrow)}")
    A(f"v_and_b32 {v(vl32)}, 31, v0")
    A(f"v_lshrrev_b32 {v(t[0])}, 7, {v(vrow)}")
    A(f"v_mul_u32_u24 {v(t[0])}, {7*1024}, {v(t[0])}")
    A(f"v_and_b32 {v(t[1])}, 127, {v(vrow)}")
    A(f"v_lshl_add_u32 {v(t[0])}, {v(t[1])}, 3, {v(t[0])}")
    A(f"s_mov_b32 {s(st)}, {WS_STATS}")
    A(f"s_mov_b32 {s(k.st2)}, {WS_STATS+4096}")
    for z in range(7):
        so = st if z < 4 else k.st2
        A(f"buffer_load_dwordx2 {v(ST+2*z,2)}, {v(t[0])}, {s(srd,4)}, {s(so)} offen offset:{(z&3)*1024}")
    for it in range(7):
        A(f"v_add_u32 {v(t[1])}, {32*it}, {v(vl32)}")
        A(f"v_mul_u32_u24 {v(t[2])}, 4682, {v(t[1])}")
        A(f"v_lshrrev_b32 {v(t[2])}, 16, {v(t[2])}")
        A(f"v_mul_u32_u24 {v(t[3])}, 14, {v(t[2])}")
        A(f"v_sub_u32 {v(t[1])}, {v(t[1])}, {v(t[3])}")
        A(f"v_lshlrev_b32 {v(t[1])}, 4, {v(t[1])}")
        A(f"v_lshl_add_u32 {v(t[1])}, {v(t[2])}, 19, {v(t[1])}")
        A(f"v_lshl_add_u32 {v(va[it])}, {v(vrow)}, 8, {v(t[1])}")
        A(f"buffer_load_dwordx4 {v(D+4*it,4)}, {v(va[it])}, {s(srd,4)}, 0 offen")
    A("s_waitcnt vmcnt(7)")
    for z in range(1, 7):
        A(f"v_pk_add_f32 {v(ST,2)}, {v(ST,2)}, {v(ST+2*z,2)}")
    A(f"v_mul_f32 {v(mean)}, {hex(f2u(1.0/1792))}, {v(ST)}")
    A(f"v_mul_f32 {v(t[0])}, {hex(f2u(1.0/1792))}, {v(ST+1)}")
    A(f"v_fma_f32 {v(t[0])}, -{v(mean)}, {v(mean)}, {v(t[0])}")
    A(f"v_max_f32 {v(t[0])}, 0, {v(t[0])}")
    A(f"v_add_f32 {v(t[0])}, {hex(f2u(1e-5))}, {v(t[0])}")
    A(f"v_rsq_f32 {v(rstd)}, {v(t[0])}")
    A(f"v_mul_f32 {v(mean)}, {v(mean)}, {v(rstd)}")
    for it in range(7):
        A(f"s_waitcnt vmcnt({6-it})" if it == 0 else "s_nop 0")
        if it == 0: A("s_waitcnt vmcnt(0)")
        for i in range(4):
            r = D + 4*it + i
            A(f"v_lshlrev_b32 {v(t[0])}, 16, {v(r)}")
            A(f"v_and_b32 {v(t[1])}, 0xffff0000, {v(r)}")
            A(f"v_fma_f32 {v(t[0])}, {v(t[0])}, {v(rstd)}, -{v(mean)}")
            A(f"v_fma_f32 {v(t[1])}, {v(t[1])}, {v(rstd)}, -{v(mean)}")
            A(f"v_cvt_pk_bf16_f32 {v(r)}, {v(t[0])}, {v(t[1])}")
        A(f"buffer_store_dwordx4 {v(D+4*it,4)}, {v(va[it])}, {s(srd,4)}, 0 offen")
    s_h, s_p = S.alloc(), S.alloc()
    A(f"s_lshr_b32 {s(s_h)}, s2, 3")
    A(f"s_and_b32 {s(s_p)}, s2, 7")
    A(f"s_cmp_eq_u32 {s(sw)}, 0")
    A(f"s_cbranch_scc0 {name}_z")
    L = V.alloc(64, 4)
    A(f"s_lshl_b32 {s(st)}, {s(s_h)}, 17")
    A(f"s_lshl_b32 {s(k.st2)}, {s(s_p)}, 10")
    A(f"s_add_u32 {s(st)}, {s(st)}, {s(k.st2)}")
    A(f"s_add_u32 {s(st)}, {s(st)}, {WS_KVP}")
    A(f"v_lshlrev_b32 {v(t[0])}, 4, {v(vl)}")
    for i in range(16):
        A(f"buffer_load_dwordx4 {v(L+4*i,4)}, {v(t[0])}, {s(srd,4)}, {s(st)} offen")
        A(f"s_add_u32 {s(st)}, {s(st)}, 8192")
    A("s_waitcnt vmcnt(0)")
    for i in range(1, 16):
        A(f"v_pk_add_f32 {v(L,2)}, {v(L,2)}, {v(L+4*i,2)}")
        A(f"v_pk_add_f32 {v(L+2,2)}, {v(L+2,2)}, {v(L+4*i+2,2)}")
    A(f"v_cvt_pk_bf16_f32 {v(L)}, {v(L)}, {v(L+1)}")
    A(f"v_cvt_pk_bf16_f32 {v(L+1)}, {v(L+2)}, {v(L+3)}")
    A(f"s_lshr_b32 {s(st)}, {s(s_p)}, 2")
    A(f"s_lshl_b32 {s(st)}, {s(st)}, 1")
    A(f"s_and_b32 {s(k.st2)}, {s(s_p)}, 1")
    A(f"s_add_u32 {s(st)}, {s(st)}, {s(k.st2)}")
    A(f"s_lshl_b32 {s(st)}, {s(st)}, 10")
    A(f"s_bfe_u32 {s(k.st2)}, {s(s_p)}, 0x10001")
    A(f"s_lshl_b32 {s(k.st2)}, {s(k.st2)}, 3")
    A(f"s_add_u32 {s(st)}, {s(st)}, {s(k.st2)}")
    A(f"s_lshl_b32 {s(k.st2)}, {s(s_h)}, 12")
    A(f"s_add_u32 {s(st)}, {s(st)}, {s(k.st2)}")
    A(f"s_add_u32 {s(st)}, {s(st)}, {WS_KVR}")
    A(f"buffer_store_dwordx2 {v(L,2)}, {v(t[0])}, {s(srd,4)}, {s(st)} offen")
    A("s_endpgm")
    A.label(f"{name}_z")
    A(f"s_cmp_eq_u32 {s(sw)}, 1")
    A(f"s_cbranch_scc0 {k.end}")
    A(f"s_cmp_eq_u32 {s(s_p)}, 0")
    A(f"s_cbranch_scc0 {k.end}")
    A(f"s_lshl_b32 {s(st)}, {s(s_h)}, 12")
    A(f"s_add_u32 {s(st)}, {s(st)}, {WS_ZP}")
    A(f"v_lshlrev_b32 {v(t[0])}, 2, {v(vl)}")
    for i in range(16):
        A(f"buffer_load_dword {v(L+i)}, {v(t[0])}, {s(srd,4)}, {s(st)} offen offset:{i*256}")
    A("s_waitcnt vmcnt(0)")
    for i in range(1, 16):
        A(f"v_add_f32 {v(L)}, {v(L)}, {v(L+i)}")
    A(f"v_cvt_pk_bf16_f32 {v(L)}, {v(L)}, {v(L)}")
    A(f"v_lshrrev_b32 {v(t[1])}, 5, {v(vl)}")
    A(f"v_lshlrev_b32 {v(t[1])}, 6, {v(t[1])}")
    A(f"v_bfe_u32 {v(t[2])}, {v(vl)}, 2, 2")
    A(f"v_lshl_add_u32 {v(t[1])}, {v(t[2])}, 4, {v(t[1])}")
    A(f"v_bfe_u32 {v(t[2])}, {v(vl)}, 4, 1")
    A(f"v_lshl_add_u32 {v(t[1])}, {v(t[2])}, 3, {v(t[1])}")
    A(f"v_and_b32 {v(t[2])}, 3, {v(vl)}")
    A(f"v_lshl_add_u32 {v(t[1])}, {v(t[2])}, 1, {v(t[1])}")
    A(f"s_lshl_b32 {s(st)}, {s(s_h)}, 7")
    A(f"s_add_u32 {s(st)}, {s(st)}, {WS_ZR}")
    A(f"buffer_store_short {v(L)}, {v(t[1])}, {s(srd,4)}, {s(st)} offen")
    k.finish()
    return dict(lds=0, vgpr=V.hi, sgpr=S.hi)
```

```python
from common import *
from phase import *

def wg_map_tj(A, k, s_tb, s_j):
    st = k.st
    A(f"s_and_b32 {s(s_tb)}, s2, 3")
    A(f"s_lshl_b32 {s(s_tb)}, {s(s_tb)}, 2")
    A(f"s_bfe_u32 {s(st)}, s2, 0x20003")
    A(f"s_add_u32 {s(s_tb)}, {s(s_tb)}, {s(st)}")
    A(f"s_bfe_u32 {s(s_j)}, s2, 0x10002")
    A(f"s_lshl_b32 {s(s_j)}, {s(s_j)}, 3")
    A(f"s_lshr_b32 {s(st)}, s2, 5")
    A(f"s_add_u32 {s(s_j)}, {s(s_j)}, {s(st)}")

def wk_reduce(A, name, k, s_wk, regs_lo, regs_hi, n, vad, slot_bytes):
    st, sw, vl = k.st, k.swave, k.vlane
    A("s_barrier")
    A(f"s_xor_b32 {s(st)}, {s(sw)}, 2")
    A(f"s_mul_i32 {s(st)}, {s(st)}, {slot_bytes}")
    A(f"v_lshlrev_b32 {v(vad)}, 4, {v(vl)}")
    A(f"v_add_u32 {v(vad)}, {s(st)}, {v(vad)}")
    l1, l2 = A.newlabel(name + "_s"), A.newlabel(name + "_d")
    A(f"s_cmp_eq_u32 {s(s_wk)}, 0")
    A(f"s_cbranch_scc0 {l1}")
    for g_ in range(n//4): A(f"ds_write_b128 {v(vad)}, {v(regs_hi+4*g_,4)} offset:{g_*1024}")
    A(f"s_branch {l2}")
    A.label(l1)
    for g_ in range(n//4): A(f"ds_write_b128 {v(vad)}, {v(regs_lo+4*g_,4)} offset:{g_*1024}")
    for i in range(n): A(f"v_mov_b32 {v(regs_lo+i)}, {v(regs_hi+i)}")
    A.label(l2)
    A("s_waitcnt lgkmcnt(0)")
    A("s_barrier")
    A(f"s_mul_i32 {s(st)}, {s(sw)}, {slot_bytes}")
    A(f"v_lshlrev_b32 {v(vad)}, 4, {v(vl)}")
    A(f"v_add_u32 {v(vad)}, {s(st)}, {v(vad)}")
    for g_ in range(n//4): A(f"ds_read_b128 {v(regs_hi+4*g_,4)}, {v(vad)} offset:{g_*1024}")
    A("s_waitcnt lgkmcnt(0)")
    for i in range(0, n, 2): A(f"v_pk_add_f32 {v(regs_lo+i,2)}, {v(regs_lo+i,2)}, {v(regs_hi+i,2)}")

def gen_k3(A, name="k3_kernel"):
    k = K(A, name)
    V, S = k.V, k.S
    k.begin(256, ['x', 'wqkv', 'wphi', 'win', 'wsp', 'bsp', 'ws'])
    t = k.t; st = k.st; st2 = k.st2; vl = k.vlane; sw = k.swave
    s_tb, s_j, s_row0, s_wm, s_wk, s_wn = (S.alloc() for _ in range(6))
    wg_map_tj(A, k, s_tb, s_j)
    A(f"s_lshl_b32 {s(s_row0)}, {s(s_tb)}, 7")
    A(f"s_and_b32 {s(s_wm)}, {s(sw)}, 1")
    A(f"s_bfe_u32 {s(s_wk)}, {s(sw)}, 0x10001")
    A(f"s_lshr_b32 {s(s_wn)}, {s(sw)}, 2")
    k.waitargs()
    srd_x = k.srd('x', 2048*1024*2)
    srd_wz = k.srd('win', 1024*3584*2)
    srd_wq = k.srd('wqkv', 1024*3072*2)
    srd_ws = k.srd('ws', WS_END)
    srd_sp = k.srd('wsp', 2048*2048*2)
    srd_z2 = k.srd('ws', 8*MB, off=WS_Z2N)
    srd_t = S.alloc(4, 4)
    Z1 = V.alloc(16, 4)
    vgate = [V.alloc(), V.alloc()]; vbsp = [V.alloc(), V.alloc()]
    vtok = V.alloc()
    A(f"s_lshl_b32 {s(st)}, {s(s_wm)}, 6")
    A(f"s_lshl_b32 {s(st2)}, {s(s_wk)}, 5")
    A(f"s_add_u32 {s(st)}, {s(st)}, {s(st2)}")
    A(f"s_add_u32 {s(st)}, {s(st)}, {s(s_row0)}")
    A(f"v_and_b32 {v(vtok)}, 15, {v(vl)}")
    A(f"v_add_u32 {v(vtok)}, {s(st)}, {v(vtok)}")
    A(f"v_lshlrev_b32 {v(t[0])}, 2, {v(vtok)}")
    A(f"s_mov_b32 {s(st)}, {WS_GATE}")
    A(f"buffer_load_dword {v(vgate[0])}, {v(t[0])}, {s(srd_ws,4)}, {s(st)} offen")
    A(f"buffer_load_dword {v(vgate[1])}, {v(t[0])}, {s(srd_ws,4)}, {s(st)} offen offset:64")
    k.srd('bsp', 4096, reg=srd_t)
    A(f"v_lshlrev_b32 {v(t[0])}, 1, {v(vtok)}")
    A(f"buffer_load_ushort {v(vbsp[0])}, {v(t[0])}, {s(srd_t,4)}, 0 offen")
    A(f"buffer_load_ushort {v(vbsp[1])}, {v(t[0])}, {s(srd_t,4)}, 0 offen offset:32")

    mark0 = V.mark(); smark0 = S.mark()
    PZ = Panel('z', 256, 49152, 3); PQ = Panel('q', 128, 98304, 3)
    PHI = 122880
    ph = Phase(A, V, S, 't23', 3, 4, 1, [PZ, PQ])
    ph.alloc(6)
    wz = [[V.alloc()] for _ in range(4)]; wq = [[V.alloc()] for _ in range(2)]
    ph.setup_m0(sw)
    ph.setup_x_dma(vl, sw, s_row0, 2048, t[0], t[1], st)
    ph.setup_x_read(vl, s_wm, s_wk, t[0], t[1], t[2], st)
    s_ch = S.alloc(); s_c0 = S.alloc()
    for i in range(4):
        ph.wa[0] = (PZ, wz[i])
        A(f"s_lshl_b32 {s(s_ch)}, {s(s_wn)}, 2")
        if i: A(f"s_add_u32 {s(s_ch)}, {s(s_ch)}, {i}")
        ph.setup_w_read(0, vl, s_wk, s_ch, t, st)
    for i in range(2):
        ph.wa[0] = (PQ, wq[i])
        A(f"s_lshl_b32 {s(s_ch)}, {s(s_wn)}, 1")
        if i: A(f"s_add_u32 {s(s_ch)}, {s(s_ch)}, {i}")
        ph.setup_w_read(0, vl, s_wk, s_ch, t, st)
    A(f"s_mul_i32 {s(s_c0)}, {s(s_j)}, 224")
    def cm_z(vd, vq):
        A(f"v_lshlrev_b32 {v(vd)}, 5, {v(vq)}")
        A(f"v_add_u32 {v(vd)}, {s(s_c0)}, {v(vd)}")
        A(f"v_cmp_eq_u32 vcc, 7, {v(vq)}")
        A(f"v_mov_b32 {v(t[5])}, {OOB}")
        A(f"v_cndmask_b32 {v(vd)}, {v(vd)}, {v(t[5])}, vcc")
    ph.setup_w_dma(PZ, vl, sw, 7168, cm_z, t, st)
    s_c1 = S.alloc()
    A(f"s_lshl_b32 {s(s_c1)}, {s(s_j)}, 7")
    def cm_q(vd, vq):
        A(f"v_lshlrev_b32 {v(vd)}, 5, {v(vq)}")
        A(f"v_add_u32 {v(vd)}, {s(s_c1)}, {v(vd)}")
    ph.setup_w_dma(PQ, vl, sw, 6144, cm_q, t, st)
    A(f"s_mov_b32 {s(ph.sx_off)}, 0"); A(f"s_mov_b32 {s(PZ.s_off)}, 0"); A(f"s_mov_b32 {s(PQ.s_off)}, 0")
    k.srd('wphi', 32*32*32*2, reg=srd_t)
    A(f"s_and_b32 {s(st)}, {s(sw)}, 3")
    A(f"s_lshl_b32 {s(st)}, {s(st)}, 10")
    A(f"s_add_u32 m0, {s(st)}, {PHI}")
    A(f"s_lshl_b32 {s(st2)}, {s(s_j)}, 12")
    A(f"s_add_u32 {s(st)}, {s(st)}, {s(st2)}")
    A(f"v_lshlrev_b32 {v(t[0])}, 4, {v(vl)}")
    A(f"buffer_load_dwordx4 {v(t[0])}, {s(srd_t,4)}, {s(st)} offen lds")
    src = lambda stg: dict(x=(srd_x, 128), z=(srd_wz, 64*7168), q=(srd_wq, 64*6144))
    ph.prologue_dma(16, src)
    A(f"s_cmp_eq_u32 {s(s_wn)}, 0")
    A(f"s_cbranch_scc0 {name}_t23b")
    ph.wa = [(PZ, wz[0]), (PZ, wz[1]), (PZ, wz[2]), (PZ, wz[3]), (PQ, wq[0]), (PQ, wq[1])]
    ph.mainloop(16, src, 6)
    A(f"s_branch {name}_t23j")
    A.label(f"{name}_t23b")
    ph.wa = [(PZ, wz[0]), (PZ, wz[1]), (PZ, wz[2]), (PQ, wq[0]), (PQ, wq[1])]
    save_acc = ph.accb
    ph.accb = lambda tb, fb: ph.acc + (tb*6 + (fb if fb < 3 else fb + 1))*4
    ph.mainloop(16, src, 5)
    ph.accb = save_acc
    for tb in range(4):
        for i in range(4): A(f"v_mov_b32 {v(ph.accb(tb,3)+i)}, 0")
    A.label(f"{name}_t23j")
    A("s_nop 7")
    free = ph.xf[0][0]
    wk_reduce(A, name+"_r23", k, s_wk, ph.acc, ph.acc + 48, 48, t[0], 12288)
    hi = ph.acc + 48
    KVO = hi; ZO = hi + 16; WPH = hi + 24
    A(f"s_lshl_b32 {s(st2)}, {s(s_j)}, 1")
    A(f"s_add_u32 {s(st2)}, {s(st2)}, {s(s_wn)}")
    A(f"s_lshl_b32 {s(st)}, {s(st2)}, 12")
    A(f"s_add_u32 {s(st)}, {s(st)}, {WS_KVR}")
    A(f"v_lshlrev_b32 {v(t[0])}, 4, {v(vl)}")
    for i in range(4):
        A(f"buffer_load_dwordx4 {v(KVO+4*i,4)}, {v(t[0])}, {s(srd_ws,4)}, {s(st)} offen offset:{i*1024}")
    A(f"s_lshl_b32 {s(st)}, {s(st2)}, 7")
    A(f"s_add_u32 {s(st)}, {s(st)}, {WS_ZR}")
    A(f"v_and_b32 {v(t[0])}, 0x30, {v(vl)}")
    for i in range(2):
        A(f"buffer_load_dwordx4 {v(ZO+4*i,4)}, {v(t[0])}, {s(srd_ws,4)}, {s(st)} offen offset:{i*64}")
    A(f"s_lshl_b32 {s(st)}, {s(s_wn)}, 11")
    A(f"s_add_u32 {s(st)}, {s(st)}, {PHI}")
    emit_load_wphi(A, k, WPH, st, t[0], t[1])
    vc2 = hi + 32
    A(f"v_mov_b32 {v(vc2)}, {hex(f2u(GELU_C2))}")
    sL, sNL = S.alloc(), S.alloc()
    A(f"s_mov_b32 {s(sL)}, {hex(f2u(LOG2E))}")
    A(f"s_mov_b32 {s(sNL)}, {hex(f2u(-LOG2E))}")
    for tp in range(2):
        regs_ = [ph.accb(tp, 0) + i for i in range(16)]
        emit_gelu(A, regs_, [free + i for i in range(16)], vc2)
        for fb in range(4):
            b = ph.accb(tp, fb)
            A(f"v_cvt_pk_bf16_f32 {v(Z1+tp*8+fb*2)}, {v(b)}, {v(b+1)}")
            A(f"v_cvt_pk_bf16_f32 {v(Z1+tp*8+fb*2+1)}, {v(b+2)}, {v(b+3)}")
    f = free
    Qop = f; P = f + 4; E = f + 12; AP = f + 28; AN = f + 32; O = f + 36; DN = f + 44; PK = f + 48
    t0, t1 = f + 52, f + 53
    vo = hi + 33
    A(f"s_mov_b32 {s(st)}, {OH_STRIDE}")
    A(f"v_mul_lo_u32 {v(vo)}, {v(vtok)}, {s(st)}")
    A(f"s_lshl_b32 {s(st)}, {s(st2)}, 6")
    A(f"v_add_u32 {v(vo)}, {s(st)}, {v(vo)}")
    A(f"v_bfe_u32 {v(t[0])}, {v(vl)}, 4, 1")
    A(f"v_lshl_add_u32 {v(vo)}, {v(t[0])}, 5, {v(vo)}")
    A(f"v_lshrrev_b32 {v(t[0])}, 5, {v(vl)}")
    A(f"v_lshl_add_u32 {v(vo)}, {v(t[0])}, 4, {v(vo)}")
    A("s_waitcnt vmcnt(0) lgkmcnt(0)")
    for tp in range(2):
        a0, a1 = ph.accb(tp, 4), ph.accb(tp, 5)
        A(f"v_cvt_pk_bf16_f32 {v(Qop)}, {v(a0)}, {v(a0+1)}")
        A(f"v_cvt_pk_bf16_f32 {v(Qop+1)}, {v(a0+2)}, {v(a0+3)}")
        A(f"v_cvt_pk_bf16_f32 {v(Qop+2)}, {v(a1)}, {v(a1+1)}")
        A(f"v_cvt_pk_bf16_f32 {v(Qop+3)}, {v(a1+2)}, {v(a1+3)}")
        mfma16(A, P, WPH, Qop); mfma16(A, P+4, WPH+4, Qop)
        emit_phi(A, P, AP, AN, E, t0, t1, sL, sNL)
        for db in range(2):
            mfma16(A, O+4*db, KVO+4*db, AP)
            mfma16(A, O+4*db, KVO+8+4*db, AN, O+4*db)
        mfma16(A, DN, ZO, AP); mfma16(A, DN, ZO+4, AN, DN)
        A(f"v_add_f32 {v(t0)}, {hex(f2u(1e-6))}, {v(DN)}")
        A(f"v_rcp_f32 {v(t0)}, {v(t0)}")
        A(f"v_mul_f32 {v(t0)}, {v(t0)}, {v(vgate[tp])}")
        for i in range(8): A(f"v_mul_f32 {v(O+i)}, {v(O+i)}, {v(t0)}")
        for i in range(4): A(f"v_cvt_pk_bf16_f32 {v(PK+i)}, {v(O+2*i)}, {v(O+2*i+1)}")
        A(f"v_permlane16_swap_b32 {v(PK)}, {v(PK+2)}")
        A(f"v_permlane16_swap_b32 {v(PK+1)}, {v(PK+3)}")
        A(f"s_mov_b32 {s(st)}, {WS_OH + tp*16*OH_STRIDE}")
        A(f"buffer_store_dwordx4 {v(PK,4)}, {v(vo)}, {s(srd_ws,4)}, {s(st)} offen")
    V.release(mark0); S.release(smark0)

    PW = Panel('w', 256, 65536, 4)
    p4 = Phase(A, V, S, 't4', 4, 4, 1, [PW])
    p4.alloc(4)
    for i in range(4): p4.alloc_wa(i, PW)
    s_ch = S.alloc()
    A("s_barrier")
    p4.setup_m0(sw)
    p4.setup_x_dma(vl, sw, s_row0, 4096, t[0], t[1], st)
    p4.setup_x_read(vl, s_wm, s_wk, t[0], t[1], t[2], st)
    for i in range(4):
        A(f"s_lshl_b32 {s(s_ch)}, {s(s_wn)}, 2")
        if i: A(f"s_add_u32 {s(s_ch)}, {s(s_ch)}, {i}")
        p4.setup_w_read(i, vl, s_wk, s_ch, t, st)
    def cm_w(vd, vq):
        A(f"v_lshlrev_b32 {v(vd)}, 5, {v(vq)}")
        A(f"v_cmp_eq_u32 vcc, 7, {v(vq)}")
        A(f"v_mov_b32 {v(t[5])}, {OOB}")
        A(f"v_cndmask_b32 {v(vd)}, {v(vd)}, {v(t[5])}, vcc")
    p4.setup_w_dma(PW, vl, sw, 256, cm_w, t, st)
    A(f"s_mov_b32 {s(p4.sx_off)}, 0")
    A(f"s_lshl_b32 {s(PW.s_off)}, {s(s_j)}, 19")
    src4 = lambda stg: dict(x=(srd_sp, 128), w=(srd_z2, 64*256))
    A("s_waitcnt vmcnt(0)")
    p4.prologue_dma(32, src4)
    A(f"s_cmp_eq_u32 {s(s_wn)}, 0")
    A(f"s_cbranch_scc0 {name}_t4b")
    p4.mainloop(32, src4, 4)
    A(f"s_branch {name}_t4j")
    A.label(f"{name}_t4b")
    p4.mainloop(32, src4, 3)
    for tb in range(4):
        for i in range(4): A(f"v_mov_b32 {v(p4.accb(tb,3)+i)}, 0")
    A.label(f"{name}_t4j")
    A("s_nop 7")
    wk_reduce(A, name+"_r4", k, s_wk, p4.acc, p4.acc + 32, 32, t[0], 8192)
    free = p4.xf[0][0]
    PK = free; U = free + 4
    vh = V.alloc(); vh2 = V.alloc(); vsc = V.alloc()
    A(f"s_mov_b32 {s(st)}, {OH_STRIDE}")
    A(f"v_mul_lo_u32 {v(vh)}, {v(vtok)}, {s(st)}")
    A(f"s_mul_i32 {s(st)}, {s(s_j)}, 224")
    A(f"s_lshl_b32 {s(st2)}, {s(s_wn)}, 7")
    A(f"s_add_u32 {s(st)}, {s(st)}, {s(st2)}")
    A(f"s_add_u32 {s(st)}, {s(st)}, 2048")
    A(f"v_add_u32 {v(vh)}, {s(st)}, {v(vh)}")
    A(f"v_lshrrev_b32 {v(t[0])}, 4, {v(vl)}")
    A(f"v_lshl_add_u32 {v(vh2)}, {v(t[0])}, 3, {v(vh)}")
    A(f"v_bfe_u32 {v(t[0])}, {v(vl)}, 4, 1")
    A(f"v_lshl_add_u32 {v(vh)}, {v(t[0])}, 5, {v(vh)}")
    A(f"v_lshrrev_b32 {v(t[0])}, 5, {v(vl)}")
    A(f"v_lshl_add_u32 {v(vh)}, {v(t[0])}, 4, {v(vh)}")
    for tp in range(2):
        A(f"v_lshlrev_b32 {v(t[1])}, 16, {v(vbsp[tp])}")
        A(f"v_sub_f32 {v(vsc)}, 1.0, {v(vgate[tp])}")
        for fb in range(4):
            b = p4.accb(tp, fb)
            z = Z1 + tp*8 + fb*2
            for i in range(4):
                A(f"v_add_f32 {v(b+i)}, {v(b+i)}, {v(t[1])}")
                A(f"v_mul_f32 {v(b+i)}, {v(b+i)}, {v(vsc)}")
            A(f"v_lshlrev_b32 {v(U)}, 16, {v(z)}")
            A(f"v_and_b32 {v(U+1)}, 0xffff0000, {v(z)}")
            A(f"v_lshlrev_b32 {v(U+2)}, 16, {v(z+1)}")
            A(f"v_and_b32 {v(U+3)}, 0xffff0000, {v(z+1)}")
            for i in range(4): A(f"v_mul_f32 {v(b+i)}, {v(b+i)}, {v(U+i)}")
        A(f"s_mov_b32 {s(st)}, {WS_OH + tp*16*OH_STRIDE}")
        for pr in range(2):
            b0, b1 = p4.accb(tp, 2*pr), p4.accb(tp, 2*pr+1)
            A(f"v_cvt_pk_bf16_f32 {v(PK)}, {v(b0)}, {v(b0+1)}")
            A(f"v_cvt_pk_bf16_f32 {v(PK+1)}, {v(b0+2)}, {v(b0+3)}")
            if pr == 1:
                lab = A.newlabel(name + "_h1"); lab2 = A.newlabel(name + "_h2")
                A(f"s_cmp_eq_u32 {s(s_wn)}, 0")
                A(f"s_cbranch_scc1 {lab}")
                A(f"buffer_store_dwordx2 {v(PK,2)}, {v(vh2)}, {s(srd_ws,4)}, {s(st)} offen offset:64")
                A(f"s_branch {lab2}")
                A.label(lab)
            A(f"v_cvt_pk_bf16_f32 {v(PK+2)}, {v(b1)}, {v(b1+1)}")
            A(f"v_cvt_pk_bf16_f32 {v(PK+3)}, {v(b1+2)}, {v(b1+3)}")
            A(f"v_permlane16_swap_b32 {v(PK)}, {v(PK+2)}")
            A(f"v_permlane16_swap_b32 {v(PK+1)}, {v(PK+3)}")
            A(f"buffer_store_dwordx4 {v(PK,4)}, {v(vh)}, {s(srd_ws,4)}, {s(st)} offen offset:{pr*64}")
            if pr == 1: A.label(lab2)
            A("s_nop 1")
    k.finish()
    return dict(lds=131072, vgpr=V.hi, sgpr=S.hi)

def gen_k4(A, name="k4_kernel"):
    k = K(A, name)
    V, S = k.V, k.S
    k.begin(256, ['wo', 'wout', 'out', 'ws'])
    t = k.t; st = k.st; st2 = k.st2; vl = k.vlane; sw = k.swave
    s_tb, s_j, s_row0, s_wm, s_wk, s_wn = (S.alloc() for _ in range(6))
    wg_map_tj(A, k, s_tb, s_j)
    A(f"s_lshl_b32 {s(s_row0)}, {s(s_tb)}, 7")
    A(f"s_and_b32 {s(s_wm)}, {s(sw)}, 1")
    A(f"s_bfe_u32 {s(s_wk)}, {s(sw)}, 0x10001")
    A(f"s_lshr_b32 {s(s_wn)}, {s(sw)}, 2")
    k.waitargs()
    srd_oh = k.srd('ws', 2048*OH_STRIDE, off=WS_OH)
    srd_w = k.srd('wo', 1024*1024*2)
    srd_o = k.srd('out', 2048*1024*2)
    PW = Panel('w', 128, 98304, 6)
    ph = Phase(A, V, S, 't5', 6, 4, 1, [PW])
    ph.alloc(2)
    for i in range(2): ph.alloc_wa(i, PW)
    s_ch, s_c0 = S.alloc(), S.alloc()
    ph.setup_m0(sw)
    ph.setup_x_dma(vl, sw, s_row0, OH_STRIDE, t[0], t[1], st)
    ph.setup_x_read(vl, s_wm, s_wk, t[0], t[1], t[2], st)
    for i in range(2):
        A(f"s_lshl_b32 {s(s_ch)}, {s(s_wn)}, 1")
        if i: A(f"s_add_u32 {s(s_ch)}, {s(s_ch)}, {i}")
        ph.setup_w_read(i, vl, s_wk, s_ch, t, st)
    A(f"s_lshl_b32 {s(s_c0)}, {s(s_j)}, 7")
    def cm(vd, vq):
        A(f"v_lshlrev_b32 {v(vd)}, 5, {v(vq)}")
        A(f"v_add_u32 {v(vd)}, {s(s_c0)}, {v(vd)}")
    ph.setup_w_dma(PW, vl, sw, 2048, cm, t, st)
    A(f"s_mov_b32 {s(ph.sx_off)}, 0"); A(f"s_mov_b32 {s(PW.s_off)}, 0")
    src = lambda stg: dict(x=(srd_oh, 128), w=(srd_w, 64*2048))
    ph.prologue_dma(44, src)
    def sw_to_wout():
        k.srd('wout', 1792*1024*2, reg=srd_w)
        A(f"s_mov_b32 {s(PW.s_off)}, 0")
    ph.mainloop(44, src, 2, switch={16: sw_to_wout})
    A("s_nop 7")
    wk_reduce(A, name+"_r", k, s_wk, ph.acc, ph.acc + 16, 16, t[0], 4096)
    free = ph.xf[0][0]; PK = free
    vo = V.alloc()
    A(f"s_lshl_b32 {s(st)}, {s(s_wm)}, 6")
    A(f"s_lshl_b32 {s(st2)}, {s(s_wk)}, 5")
    A(f"s_add_u32 {s(st)}, {s(st)}, {s(st2)}")
    A(f"s_add_u32 {s(st)}, {s(st)}, {s(s_row0)}")
    A(f"v_and_b32 {v(vo)}, 15, {v(vl)}")
    A(f"v_add_u32 {v(vo)}, {s(st)}, {v(vo)}")
    A(f"v_lshlrev_b32 {v(vo)}, 11, {v(vo)}")
    A(f"s_lshl_b32 {s(st)}, {s(s_wn)}, 6")
    A(f"s_add_u32 {s(st)}, {s(st)}, {s(s_c0)}")
    A(f"v_add_u32 {v(vo)}, {s(st)}, {v(vo)}")
    A(f"v_bfe_u32 {v(t[0])}, {v(vl)}, 4, 1")
    A(f"v_lshl_add_u32 {v(vo)}, {v(t[0])}, 5, {v(vo)}")
    A(f"v_lshrrev_b32 {v(t[0])}, 5, {v(vl)}")
    A(f"v_lshl_add_u32 {v(vo)}, {v(t[0])}, 4, {v(vo)}")
    for tp in range(2):
        b0, b1 = ph.accb(tp, 0), ph.accb(tp, 1)
        A(f"v_cvt_pk_bf16_f32 {v(PK)}, {v(b0)}, {v(b0+1)}")
        A(f"v_cvt_pk_bf16_f32 {v(PK+1)}, {v(b0+2)}, {v(b0+3)}")
        A(f"v_cvt_pk_bf16_f32 {v(PK+2)}, {v(b1)}, {v(b1+1)}")
        A(f"v_cvt_pk_bf16_f32 {v(PK+3)}, {v(b1+2)}, {v(b1+3)}")
        A(f"v_permlane16_swap_b32 {v(PK)}, {v(PK+2)}")
        A(f"v_permlane16_swap_b32 {v(PK+1)}, {v(PK+3)}")
        A(f"s_mov_b32 {s(st)}, {tp*16*2048}")
        A(f"buffer_store_dwordx4 {v(PK,4)}, {v(vo)}, {s(srd_o,4)}, {s(st)} offen")
        A("s_nop 1")
    k.finish()
    return dict(lds=147456, vgpr=V.hi, sgpr=S.hi)
```

```python
import re

TRANS = ("v_exp_f32", "v_log_f32", "v_rcp_f32", "v_rsq_f32", "v_sqrt_f32", "v_sin_f32", "v_cos_f32", "v_rcp_iflag_f32")

def regs_of(tok):
    tok = tok.strip()
    neg = tok.lstrip('-').replace('abs(', '').replace(')', '').replace('|', '')
    m = re.fullmatch(r"([vsa])\[(\d+):(\d+)\]", neg)
    if m: return {(m.group(1), i) for i in range(int(m.group(2)), int(m.group(3)) + 1)}
    m = re.fullmatch(r"([vsa])(\d+)", neg)
    if m: return {(m.group(1), int(m.group(2)))}
    if neg == "vcc": return {('s', 'vcc')}
    if neg == "m0": return {('s', 'm0')}
    if neg == "exec": return {('s', 'exec')}
    return set()

class Ins:
    def __init__(self, line):
        self.line = line
        t = line.split(';')[0].strip()
        self.op = t.split()[0] if t else ""
        rest = t[len(self.op):].strip()
        ops = []
        depth = 0; cur = ""
        for ch in rest:
            if ch == '[': depth += 1
            if ch == ']': depth -= 1
            if ch == ',' and depth == 0: ops.append(cur.strip()); cur = ""
            else: cur += ch
        if cur.strip(): ops.append(cur.strip())
        ops2 = []
        for o in ops:
            ops2.append(o.split()[0] if o.split() else o)
        self.ops = ops2
        self.mods = rest
        op = self.op
        self.is_mfma = op.startswith("v_mfma")
        self.is_valu = op.startswith("v_") and not self.is_mfma
        self.is_trans = any(op.startswith(x) for x in TRANS)
        self.is_ds = op.startswith("ds_")
        self.is_vmem = op.startswith("buffer_") or op.startswith("global_")
        self.is_salu = op.startswith("s_")
        self.is_perm = op.startswith("v_permlane")
        self.is_dpp = ("row_" in rest or "quad_perm" in rest or "wave_" in rest) and self.is_valu
        self.W, self.R = set(), set()
        R = lambda i: regs_of(self.ops[i]) if i < len(self.ops) else set()
        n = len(self.ops)
        if self.is_mfma:
            self.W = R(0); self.AB = R(1) | R(2); self.C = R(3); self.R = self.AB | self.C
            self.passes = 8 if "32x32" in op else 4
        elif self.is_valu:
            if op.startswith("v_cmp"):
                self.W = R(0)
                for i in range(1, n): self.R |= R(i)
            elif self.is_perm and "swap" in op:
                self.W = R(0) | R(1); self.R = R(0) | R(1)
            elif op.startswith("v_add_co") or op.startswith("v_sub_co") or op.startswith("v_addc_co") or op.startswith("v_subrev_co"):
                self.W = R(0) | R(1)
                for i in range(2, n): self.R |= R(i)
            else:
                self.W = R(0)
                for i in range(1, n): self.R |= R(i)
                if op.startswith("v_fmac") or op.startswith("v_pk_fmac") or op.startswith("v_dot2c") or op.startswith("v_writelane"): self.R |= R(0)
                if op.startswith("v_cndmask") and n == 3: self.R |= {('s', 'vcc')}
        elif self.is_ds:
            if op.startswith("ds_read") or op.startswith("ds_bpermute") or op.startswith("ds_permute") or op.startswith("ds_swizzle"):
                self.W = R(0)
                for i in range(1, n): self.R |= R(i)
            else:
                for i in range(n): self.R |= R(i)
        elif self.is_vmem:
            lds = " lds" in (" " + self.mods)
            if "store" in op or ("atomic" in op and "sc0" not in self.mods):
                for i in range(n): self.R |= R(i)
                if op.startswith("buffer_store"): self.data = R(0)
                elif op.startswith("global_store"): self.data = R(1)
                else: self.data = set()
            elif lds:
                for i in range(n): self.R |= R(i)
                self.R |= {('s', 'm0')}
            elif op.startswith("buffer_inv") or op.startswith("buffer_wbl2"):
                pass
            else:
                self.W = R(0)
                for i in range(1, n): self.R |= R(i)
            self.is_lds_dma = lds
        elif self.is_salu:
            if op.startswith("s_cmp") or op.startswith("s_waitcnt") or op.startswith("s_barrier") or op.startswith("s_cbranch") or op.startswith("s_branch") or op.startswith("s_nop") or op.startswith("s_endpgm") or op.startswith("s_setprio") or op.startswith("s_sleep"):
                for i in range(n): self.R |= R(i)
            else:
                self.W = R(0)
                for i in range(1, n): self.R |= R(i)
        self.states = 1
        if op == "s_nop":
            self.states = int(self.ops[0], 0) + 1
        self.wide_store = self.is_vmem and "store" in op and ("x4" in op or "x3" in op)

def need(prev, cur):
    n = 0
    vW = {r for r in prev.W if r[0] in 'va'}
    sW = {r for r in prev.W if r[0] == 's'}
    if prev.is_valu:
        if vW & cur.R:
            if cur.is_mfma: n = max(n, 2)
            if cur.is_perm: n = max(n, 2)
            if cur.is_dpp: n = max(n, 2)
            if cur.op.startswith("v_readfirstlane") or cur.op.startswith("v_readlane"): n = max(n, 1)
            if prev.is_trans and cur.is_valu: n = max(n, 1)
        if sW & cur.R:
            if cur.is_valu: n = max(n, 2)
            if cur.op.startswith("v_readlane") or cur.op.startswith("v_writelane"): n = max(n, 4)
            if cur.is_vmem: n = max(n, 5)
            if cur.is_salu: n = max(n, 1)
    if prev.is_mfma:
        p4 = prev.passes == 4
        D = prev.W
        if cur.is_mfma:
            if D & cur.AB: n = max(n, 8 if p4 else 12)
            if D & cur.C and not (cur.C == D and cur.passes == prev.passes): n = max(n, 6 if p4 else 10)
            if D & cur.W and not (cur.W == D) : n = max(n, 6 if p4 else 10)
        else:
            if D & (cur.R | cur.W): n = max(n, 8 if p4 else 12)
            if cur.is_valu and prev.C & cur.W: n = max(n, 3 if p4 else 7)
    if prev.wide_store:
        if prev.data & cur.W: n = max(n, 2 if cur.is_valu else 1)
    if prev.is_salu and ('s', 'm0') in prev.W and cur.is_vmem and getattr(cur, 'is_lds_dma', False):
        n = max(n, 1)
    return n

def fix(lines, window=24):
    out = []
    hist = []
    for ln in lines:
        t = ln.split(';')[0].strip()
        if not t or t.endswith(":") or t.startswith("."):
            out.append(ln); continue
        cur = Ins(ln)
        if cur.op == "s_nop" or not (cur.is_valu or cur.is_mfma or cur.is_ds or cur.is_vmem or cur.is_salu):
            out.append(ln); hist.append(cur); continue
        dist = 0; pad = 0
        for prev in reversed(hist[-window:]):
            nd = need(prev, cur)
            if nd > dist: pad = max(pad, nd - dist)
            dist += prev.states
            if dist >= 20: break
        while pad > 0:
            k = min(pad, 16)
            nop = Ins(f"s_nop {k-1}")
            out.append(f"  s_nop {k-1}"); hist.append(nop); pad -= k
        out.append(ln); hist.append(cur)
    return out
```

```python
from asmlib import *
import math

OOB = 0x7ff00000

class Panel:
    def __init__(self, name, RB, lds_base, S):
        self.name, self.RB, self.base, self.S = name, RB, lds_base, S
        self.stage = 64 * RB
        self.ppw = self.stage // 1024 // 8
        self.end = lds_base + S * self.stage
        self.nwin = (S * self.stage + 65535) // 65536

class Phase:
    def __init__(self, A, V, Sg, name, S, mt, NS, panels, xbase=0):
        self.A, self.V, self.Sg, self.name = A, V, Sg, name
        self.S, self.mt, self.NS, self.panels = S, mt, NS, panels
        self.xbase = xbase
        self.xstage = 128 * 128
        self.px = 2
        self.np = self.px + sum(p.ppw for p in panels)
        self.nxw = (S * self.xstage + 65535) // 65536
        self.swapf = None

    def alloc(self, ntmax, acc=None):
        V, Sg = self.V, self.Sg
        self.ntmax = ntmax
        self.acc = acc if acc is not None else V.alloc(self.mt * ntmax * 4, 4)
        self.xf = [[V.alloc(4, 4) for _ in range(self.mt)] for _ in range(2)]
        self.wf = [[V.alloc(4, 4) for _ in range(ntmax)] for _ in range(2)]
        self.xa = [[V.alloc() for _ in range(self.NS)] for _ in range(self.nxw)]
        self.xv = [V.alloc() for _ in range(self.px)]
        self.sx_m0, self.sx_off = Sg.alloc(), Sg.alloc()
        for p in self.panels:
            p.vo = [V.alloc() for _ in range(p.ppw)]
            p.s_m0, p.s_off = Sg.alloc(), Sg.alloc()
        self.s_cnt = Sg.alloc()
        self.wa = [None] * ntmax

    def alloc_wa(self, slot, panel):
        self.wa[slot] = (panel, [self.V.alloc() for _ in range(panel.nwin)])

    def accb(self, tb, fb):
        return self.acc + (tb * self.ntmax + fb) * 4

    def setup_m0(self, swave):
        A = self.A
        A(f"s_lshl_b32 {s(self.sx_m0)}, {s(swave)}, 11")
        if self.xbase: A(f"s_add_u32 {s(self.sx_m0)}, {s(self.sx_m0)}, {self.xbase}")
        for p in self.panels:
            A(f"s_mul_i32 {s(p.s_m0)}, {s(swave)}, {p.ppw*1024}")
            A(f"s_add_u32 {s(p.s_m0)}, {s(p.s_m0)}, {p.base}")

    def setup_x_dma(self, vlane, swave, s_row0, stride, t0, t1, st):
        A = self.A
        for jj in range(2):
            A(f"s_lshl_b32 {s(st)}, {s(swave)}, 4")
            A(f"s_add_u32 {s(st)}, {s(st)}, {s(s_row0)}")
            if jj: A(f"s_add_u32 {s(st)}, {s(st)}, 8")
            A(f"v_lshrrev_b32 {v(t0)}, 3, {v(vlane)}")
            A(f"v_add_u32 {v(t0)}, {s(st)}, {v(t0)}")
            A(f"s_mov_b32 {s(st)}, {stride}")
            A(f"v_mul_lo_u32 {v(t0)}, {v(t0)}, {s(st)}")
            A(f"v_lshrrev_b32 {v(t1)}, 4, {v(vlane)}")
            if jj: A(f"v_add_u32 {v(t1)}, 4, {v(t1)}")
            A(f"v_xor_b32 {v(t1)}, {v(t1)}, {v(vlane)}")
            A(f"v_and_b32 {v(t1)}, 7, {v(t1)}")
            A(f"v_lshl_add_u32 {v(t0)}, {v(t1)}, 4, {v(t0)}")
            if jj: A(f"v_subrev_u32 {v(self.xv[jj])}, 1024, {v(t0)}")
            else:  A(f"v_mov_b32 {v(self.xv[jj])}, {v(t0)}")

    def setup_x_read(self, vlane, s_wm, s_wk, t0, t1, t2, st):
        A = self.A
        A(f"v_and_b32 {v(t0)}, 15, {v(vlane)}")
        A(f"s_lshl_b32 {s(st)}, {s(s_wm)}, 13")
        if self.xbase: A(f"s_add_u32 {s(st)}, {s(st)}, {self.xbase}")
        A(f"v_lshlrev_b32 {v(t0)}, 7, {v(t0)}")
        A(f"v_add_u32 {v(t0)}, {s(st)}, {v(t0)}")
        A(f"v_bfe_u32 {v(t1)}, {v(vlane)}, 1, 3")
        A(f"v_lshrrev_b32 {v(t2)}, 4, {v(vlane)}")
        if s_wk is not None:
            A(f"s_mul_i32 {s(st)}, {s(s_wk)}, {4*self.NS}")
            A(f"v_add_u32 {v(t2)}, {s(st)}, {v(t2)}")
        for aa in range(self.NS):
            if aa: A(f"v_add_u32 {v(t2)}, 4, {v(t2)}")
            A(f"v_xor_b32 {v(self.xa[0][aa])}, {v(t2)}, {v(t1)}")
            A(f"v_lshl_add_u32 {v(self.xa[0][aa])}, {v(self.xa[0][aa])}, 4, {v(t0)}")
            for w in range(1, self.nxw):
                A(f"v_add_u32 {v(self.xa[w][aa])}, {65536*w}, {v(self.xa[0][aa])}")

    def setup_w_dma(self, p, vlane, swave, stride, colmap, t, st, s_stride=None):
        A = self.A
        t0, t1, t2, t3, t4 = t[:5]
        RB = p.RB
        lpr = RB // 16; rpp = 1024 // RB; llpr = int(math.log2(lpr))
        for jj in range(p.ppw):
            A(f"s_mul_i32 {s(st)}, {s(swave)}, {p.ppw*rpp}")
            if jj: A(f"s_add_u32 {s(st)}, {s(st)}, {jj*rpp}")
            A(f"v_lshrrev_b32 {v(t0)}, {llpr}, {v(vlane)}")
            A(f"v_add_u32 {v(t0)}, {s(st)}, {v(t0)}")
            A(f"v_and_b32 {v(t1)}, {lpr-1}, {v(vlane)}")
            A(f"v_lshrrev_b32 {v(t2)}, 1, {v(t1)}")
            if RB >= 256:
                A(f"v_and_b32 {v(t3)}, 3, {v(t0)}")
                A(f"v_bfe_u32 {v(t4)}, {v(t0)}, 3, 1")
                A(f"v_lshl_or_b32 {v(t3)}, {v(t4)}, 2, {v(t3)}")
            else:
                A(f"v_bfe_u32 {v(t3)}, {v(t0)}, 1, 1")
                A(f"v_bfe_u32 {v(t4)}, {v(t0)}, 3, 1")
                A(f"v_lshl_or_b32 {v(t3)}, {v(t4)}, 1, {v(t3)}")
            A(f"v_xor_b32 {v(t2)}, {v(t2)}, {v(t3)}")
            colmap(t3, t2)
            A(f"v_and_b32 {v(t1)}, 1, {v(t1)}")
            A(f"v_lshl_add_u32 {v(t3)}, {v(t1)}, 4, {v(t3)}")
            if s_stride is None:
                A(f"s_mov_b32 {s(st)}, {stride}")
                A(f"v_mul_lo_u32 {v(t0)}, {v(t0)}, {s(st)}")
            else:
                A(f"v_mul_lo_u32 {v(t0)}, {v(t0)}, {s(s_stride)}")
            A(f"v_add_u32 {v(t0)}, {v(t0)}, {v(t3)}")
            if jj: A(f"v_subrev_u32 {v(p.vo[jj])}, {jj*1024}, {v(t0)}")
            else:  A(f"v_mov_b32 {v(p.vo[jj])}, {v(t0)}")

    def setup_w_read(self, slot, vlane, s_wk, s_chunk, t, st):
        A = self.A
        p, regs_ = self.wa[slot]
        t0, t1, t2 = t[:3]
        RB = p.RB
        A(f"v_lshrrev_b32 {v(t0)}, 4, {v(vlane)}")
        A(f"v_lshlrev_b32 {v(t0)}, 3, {v(t0)}")
        A(f"v_bfe_u32 {v(t1)}, {v(vlane)}, 2, 2")
        A(f"v_add_u32 {v(t0)}, {v(t0)}, {v(t1)}")
        if s_wk is not None:
            A(f"s_mul_i32 {s(st)}, {s(s_wk)}, {32*self.NS}")
            A(f"v_add_u32 {v(t0)}, {s(st)}, {v(t0)}")
        A(f"v_lshlrev_b32 {v(t0)}, {int(math.log2(RB))}, {v(t0)}")
        A(f"v_add_u32 {v(t0)}, {p.base}, {v(t0)}")
        A(f"v_and_b32 {v(t2)}, 3, {v(vlane)}")
        A(f"v_lshl_add_u32 {v(t0)}, {v(t2)}, 3, {v(t0)}")
        A(f"v_bfe_u32 {v(t2)}, {v(vlane)}, 4, 1")
        if RB >= 256:
            A(f"v_lshl_or_b32 {v(t1)}, {v(t2)}, 2, {v(t1)}")
        else:
            A(f"v_lshrrev_b32 {v(t1)}, 1, {v(t1)}")
            A(f"v_lshl_or_b32 {v(t1)}, {v(t2)}, 1, {v(t1)}")
        A(f"v_xor_b32 {v(t2)}, {s(s_chunk)}, {v(t1)}")
        A(f"v_lshl_add_u32 {v(regs_[0])}, {v(t2)}, 5, {v(t0)}")
        for w in range(1, p.nwin):
            A(f"v_add_u32 {v(regs_[w])}, {65536*w}, {v(regs_[0])}")

    def dma_instrs(self, slot, src):
        L = []
        srd, step = src['x']
        L.append(f"s_add_u32 m0, {s(self.sx_m0)}, {slot*self.xstage}")
        L.append("s_nop 0")
        for jj in range(self.px):
            off = f" offset:{jj*1024}" if jj else ""
            L.append(f"buffer_load_dwordx4 {v(self.xv[jj])}, {s(srd,4)}, {s(self.sx_off)} offen{off} lds")
        post = f"s_add_u32 {s(self.sx_off)}, {s(self.sx_off)}, {step}"
        for p in self.panels:
            srd, step = src[p.name]
            L.append(f"s_add_u32 m0, {s(p.s_m0)}, {slot*p.stage}")
            L.append(post)
            for jj in range(p.ppw):
                off = f" offset:{jj*1024}" if jj else ""
                L.append(f"buffer_load_dwordx4 {v(p.vo[jj])}, {s(srd,4)}, {s(p.s_off)} offen{off} lds")
            post = f"s_add_u32 {s(p.s_off)}, {s(p.s_off)}, {step}"
        L.append(post)
        return L

    def read_instrs(self, slot, aa, fset, nt):
        def xr(tb):
            off = slot*self.xstage + tb*2048
            return f"ds_read_b128 {v(self.xf[fset][tb],4)}, {v(self.xa[off>>16][aa])} offset:{off & 65535}"
        def wr(fb, u):
            p, regs_ = self.wa[fb]
            off = slot*p.stage + (32*aa + 4*u)*p.RB
            return f"ds_read_b64_tr_b16 {v(self.wf[fset][fb]+2*u,2)}, {v(regs_[off>>16])} offset:{off & 65535}"
        L = [xr(0), wr(0,0), wr(0,1)]
        for fb in range(1, nt): L += [wr(fb,0), wr(fb,1)]
        for tb in range(1, self.mt): L += [xr(tb)]
        return L

    def mfma(self, tb, fb, fset, zero):
        acc = v(self.accb(tb, fb), 4)
        wa, xb = v(self.wf[fset][fb],4), v(self.xf[fset][tb],4)
        if self.swapf and self.swapf(fb): wa, xb = xb, wa
        return f"v_mfma_f32_16x16x32_bf16 {acc}, {wa}, {xb}, {'0' if zero else acc}"

    def substep(self, fset, fillers, nt, zero):
        A = self.A
        ms = [self.mfma(tb, fb, fset, zero) for tb in range(self.mt) for fb in range(nt)]
        n = len(ms)
        nf = len([f for f in fillers if not f.startswith("s_")])
        fi = 0; acc = 0.0
        rate = max(nf / n, 1.0) if nf else 0
        for i, m in enumerate(ms):
            A(m)
            acc += rate
            while fi < len(fillers) and (acc >= 1.0 or i == n-1 or fillers[fi].startswith("s_")):
                A(fillers[fi])
                if not fillers[fi].startswith("s_"): acc -= 1.0
                fi += 1

    def iteration(self, k, c, nt):
        A = self.A
        S, NS = self.S, self.NS
        slot, nslot = k % S, (k + 1) % S
        if NS == 1:
            fset = k & 1
            if c['has_next']:
                A(f"s_waitcnt vmcnt({c['vm']}) lgkmcnt(0)")
                A("s_barrier")
                fill = self.read_instrs(nslot, 0, fset ^ 1, nt) + (self.dma_instrs(slot, c['src']) if c['src'] else [])
            else:
                A("s_waitcnt lgkmcnt(0)"); fill = []
            self.substep(fset, fill, nt, c['first'])
            return
        for aa in range(NS):
            fset = aa & 1
            if aa < NS - 1:
                A("s_waitcnt lgkmcnt(0)")
                fill = self.read_instrs(slot, aa + 1, (aa + 1) & 1, nt)
            elif c['has_next']:
                A(f"s_waitcnt vmcnt({c['vm']}) lgkmcnt(0)")
                A("s_barrier")
                fill = self.read_instrs(nslot, 0, 0, nt) + (self.dma_instrs(slot, c['src']) if c['src'] else [])
            else:
                A("s_waitcnt lgkmcnt(0)"); fill = []
            self.substep(fset, fill, nt, c['first'] and aa == 0)

    def prologue_dma(self, nk, srcf):
        A = self.A
        for st in range(min(self.S, nk)):
            for ins in self.dma_instrs(st, srcf(st)): A(ins)

    def mainloop(self, nk, srcf, nt, extra_vm=0, switch=None):
        A = self.A
        S = self.S
        npro = min(S, nk)
        A(f"s_waitcnt vmcnt({(npro-1)*self.np + extra_vm})")
        A("s_barrier")
        for ins in self.read_instrs(0, 0, 0, nt): A(ins)
        U = S if (self.NS > 1 or S % 2 == 0) else 2*S
        switch = switch or {}
        def ctx(k):
            last_issued = min(nk - 1, k + S - 1)
            vm = max(0, last_issued - (k + 1)) * self.np
            return dict(vm=vm, has_next=(k + 1 < nk), first=(k == 0), src=(srcf(k + S) if k + S < nk else None))
        bounds = [0] + sorted(st - S for st in switch if st - S > 0) + [max(nk - S, 0)]
        k = 0
        for b0, b1 in zip(bounds[:-1], bounds[1:]):
            if (b0 + S) in switch: switch[b0 + S]()
            k = b0
            n = b1 - b0
            pre = 1 if k == 0 else 0
            while (n - pre) % U != 0 and pre < n: pre += 1
            pre = min(pre, n)
            for _ in range(pre):
                self.iteration(k, ctx(k), nt); k += 1
            nloop = (b1 - k) // U
            if nloop > 0:
                lab = A.newlabel(f"{self.name}_loop")
                if nloop > 1:
                    A(f"s_mov_b32 {s(self.s_cnt)}, {nloop}")
                    A(".p2align 3")
                    A.label(lab)
                for u in range(U): self.iteration(k + u, ctx(k + u), nt)
                if nloop > 1:
                    A(f"s_sub_u32 {s(self.s_cnt)}, {s(self.s_cnt)}, 1")
                    A(f"s_cmp_lg_u32 {s(self.s_cnt)}, 0")
                    A(f"s_cbranch_scc1 {lab}")
                k += nloop * U
        while k < nk:
            self.iteration(k, ctx(k), nt); k += 1
```

```python
import sys
from asmlib import *
from hazard import fix
from gen_k1 import gen_k1
from gen_k2 import gen_k2
from gen_k3 import gen_k3, gen_k4

HEADER = open("gated_mix__linear_kernel_hedgehog__mixer_gmlp__prompt.s.ref").read().split("; Override launch")[0]

def build(upto=4):
    A = Asm()
    infos = []
    gens = [("k1_kernel", gen_k1, 512), ("k2_kernel", gen_k2, 256), ("k3_kernel", gen_k3, 512), ("k4_kernel", gen_k4, 512)][:upto]
    body = Asm()
    for nm, g, blk in gens:
        info = g(body, nm); infos.append((nm, blk, info))
    head = HEADER
    for nm, blk, info in infos:
        head += f"; @launch kernel={nm} grid=(256,1,1) block=({blk},1,1) lds={info['lds']}\n"
    head += '.amdgcn_target "amdgcn-amd-amdhsa--gfx950"\n'
    lines = fix(body.lines)
    for nm, blk, info in infos: print(nm, info, file=sys.stderr)
    return head + "\n".join(lines) + "\n"

if __name__ == "__main__":
    out = sys.argv[1]
    upto = int(sys.argv[2]) if len(sys.argv) > 2 else 4
    open(out, "w").write(build(upto))
```

```python
from asmlib import *
import math, struct

MB = 1 << 20
WS_Z2N  = 0
WS_STATS = 8 * MB
WS_KVP  = 9 * MB
WS_ZP   = 13 * MB
WS_KVR  = 14 * MB
WS_ZR   = 14 * MB + 128 * 1024
WS_GATE = 14 * MB + 256 * 1024
WS_OH   = 16 * MB
WS_TS   = 28 * MB
WS_END  = 32 * MB
OH_STRIDE = 2816 * 2

def f2u(x): return struct.unpack("<I", struct.pack("<f", x))[0]
LOG2E = 1.4426950408889634
GELU_C1 = -2.0 * LOG2E * math.sqrt(2.0 / math.pi)
GELU_C2 = GELU_C1 * 0.044715

ARG = dict(x=0, wqkv=8, wphi=16, wo=24, bx=32, win=40, wsp=48, bsp=56, wout=64, gatew=72, out=80, dbg=88, ws=96)

class K:
    def __init__(self, A, name):
        self.A, self.name = A, name
        self.V = Regs('v', 1, 256)
        self.S = Regs('s', 3, 100)
        self.ptr = {}
    def begin(self, nwg, ptrs):
        A, S, V = self.A, self.S, self.V
        A.lines.append(kernel_header(self.name))
        self.end = f"{self.name}_end"
        A(f"s_cmp_ge_u32 s2, {nwg}")
        A(f"s_cbranch_scc1 {self.end}")
        for p in ptrs:
            r = S.alloc(2, 2); self.ptr[p] = r
            A(f"s_load_dwordx2 {s(r,2)}, s[0:1], {ARG[p]}")
        self.vlane = V.alloc(); self.swave = S.alloc(); self.st = S.alloc(); self.st2 = S.alloc()
        self.t = [V.alloc() for _ in range(8)]
        A(f"v_lshrrev_b32 {v(self.t[0])}, 6, v0")
        A(f"v_and_b32 {v(self.vlane)}, 63, v0")
        A(f"v_readfirstlane_b32 {s(self.swave)}, {v(self.t[0])}")
    STAMPS = False
    def stamp(self, i):
        if not K.STAMPS: return
        if not hasattr(self, 'ts'):
            self.ts = [self.S.alloc(2, 2) for _ in range(14)]
            self.tsused = set()
        self.A(f"s_mem{'real' if i < 10 else ''}time {s(self.ts[i],2)}")
        self.tsused.add(i)
    def dump_stamps(self, kidx, srd_ws, vtmp):
        if not K.STAMPS: return
        A = self.A
        lab = A.newlabel(self.name + "_ts")
        A("s_waitcnt vmcnt(0) lgkmcnt(0)")
        A(f"s_memrealtime {s(self.ts[9],2)}")
        A("s_waitcnt lgkmcnt(0)")
        A(f"s_cmp_lg_u32 {s(self.swave)}, 0")
        A(f"s_cbranch_scc1 {lab}")
        A(f"s_lshl_b32 {s(self.st)}, s2, 7")
        A(f"s_add_u32 {s(self.st)}, {s(self.st)}, {WS_TS + kidx*65536}")
        A(f"v_mov_b32 {v(vtmp+2)}, 0")
        for i in range(14):
            A(f"v_mov_b32 {v(vtmp)}, {s(self.ts[i])}")
            A(f"v_mov_b32 {v(vtmp+1)}, {s(self.ts[i]+1)}")
            A(f"buffer_store_dwordx2 {v(vtmp,2)}, {v(vtmp+2)}, {s(srd_ws,4)}, {s(self.st)} offen offset:{i*8}")
            A("s_nop 1")
        A.label(lab)
    def waitargs(self):
        self.A("s_waitcnt lgkmcnt(0)")
    def srd(self, p, nbytes, off=0, reg=None):
        A = self.A
        r = reg if reg is not None else self.S.alloc(4, 4)
        b = self.ptr[p]
        if off:
            A(f"s_add_u32 {s(r)}, {s(b)}, {off}")
            A(f"s_addc_u32 {s(r+1)}, {s(b+1)}, 0")
            A(f"s_and_b32 {s(r+1)}, {s(r+1)}, 0xffff")
        else:
            A(f"s_mov_b32 {s(r)}, {s(b)}")
            A(f"s_and_b32 {s(r+1)}, {s(b+1)}, 0xffff")
        A(f"s_mov_b32 {s(r+2)}, {nbytes}")
        A(f"s_mov_b32 {s(r+3)}, 0x20000")
        return r
    def finish(self):
        A = self.A
        A.label(self.end)
        A("s_endpgm")
        A.lines.append(kernel_desc(self.name, self.V.hi, 0, max(self.S.hi, 16)))

def emit_xreduce(A, op, t0, t1, full=True):
    A(f"v_permlane16_swap_b32 {v(t0)}, {v(t1)}")
    A(f"{op} {v(t0)}, {v(t0)}, {v(t1)}")
    A(f"v_mov_b32 {v(t1)}, {v(t0)}")
    A(f"v_permlane32_swap_b32 {v(t0)}, {v(t1)}")
    A(f"{op} {v(t0)}, {v(t0)}, {v(t1)}")
    if full:
        A(f"v_mov_b32 {v(t1)}, {v(t0)}")
        A(f"v_permlane16_swap_b32 {v(t0)}, {v(t1)}")

def emit_phi(A, p, opos, oneg, e, t0, t1, sL, sNL):
    P = lambda i: v(p + i)
    A(f"v_max3_f32 {v(t0)}, {P(0)}, {P(1)}, {P(2)}")
    A(f"v_max3_f32 {v(t1)}, -{P(0)}, -{P(1)}, -{P(2)}")
    A(f"v_max3_f32 {v(t0)}, {v(t0)}, {P(3)}, {P(4)}")
    A(f"v_max3_f32 {v(t1)}, {v(t1)}, -{P(3)}, -{P(4)}")
    A(f"v_max3_f32 {v(t0)}, {v(t0)}, {P(5)}, {P(6)}")
    A(f"v_max3_f32 {v(t1)}, {v(t1)}, -{P(5)}, -{P(6)}")
    A(f"v_max_f32 {v(t0)}, {v(t0)}, {P(7)}")
    A(f"v_max_f32 {v(t1)}, {v(t1)}, -{P(7)}")
    emit_xreduce(A, "v_max_f32", t0, t1)
    A(f"v_mul_f32 {v(t0)}, {s(sNL)}, {v(t0)}")
    A(f"v_mul_f32 {v(t1)}, {s(sNL)}, {v(t1)}")
    for i in range(8):
        A(f"v_fma_f32 {v(e+i)}, {P(i)}, {s(sL)}, {v(t0)}")
        A(f"v_fma_f32 {v(e+8+i)}, -{P(i)}, {s(sL)}, {v(t1)}")
    for i in range(16):
        A(f"v_exp_f32 {v(e+i)}, {v(e+i)}")
    A(f"v_pk_add_f32 {v(p,2)}, {v(e,2)}, {v(e+2,2)}")
    A(f"v_pk_add_f32 {v(p+2,2)}, {v(e+8,2)}, {v(e+10,2)}")
    A(f"v_pk_add_f32 {v(p+4,2)}, {v(e+4,2)}, {v(e+6,2)}")
    A(f"v_pk_add_f32 {v(p+6,2)}, {v(e+12,2)}, {v(e+14,2)}")
    A(f"v_pk_add_f32 {v(p,2)}, {v(p,2)}, {v(p+4,2)}")
    A(f"v_pk_add_f32 {v(p+2,2)}, {v(p+2,2)}, {v(p+6,2)}")
    A(f"v_add_f32 {v(t0)}, {v(p)}, {v(p+1)}")
    A(f"v_add_f32 {v(t1)}, {v(p+2)}, {v(p+3)}")
    emit_xreduce(A, "v_add_f32", t0, t1)
    A(f"v_rcp_f32 {v(t0)}, {v(t0)}")
    A(f"v_rcp_f32 {v(t1)}, {v(t1)}")
    for i in range(8):
        A(f"v_mul_f32 {v(e+i)}, {v(e+i)}, {v(t0)}")
        A(f"v_mul_f32 {v(e+8+i)}, {v(e+8+i)}, {v(t1)}")
    for i in range(4):
        A(f"v_cvt_pk_bf16_f32 {v(opos+i)}, {v(e+2*i)}, {v(e+2*i+1)}")
        A(f"v_cvt_pk_bf16_f32 {v(oneg+i)}, {v(e+8+2*i)}, {v(e+8+2*i+1)}")

def emit_gelu(A, regs, tmp, vc2):
    n = len(regs)
    for r, t in zip(regs, tmp): A(f"v_mul_f32 {v(t)}, {v(r)}, {v(r)}")
    for r, t in zip(regs, tmp): A(f"v_fmaak_f32 {v(t)}, {v(vc2)}, {v(t)}, {hex(f2u(GELU_C1))}")
    for r, t in zip(regs, tmp): A(f"v_mul_f32 {v(t)}, {v(r)}, {v(t)}")
    for r, t in zip(regs, tmp): A(f"v_exp_f32 {v(t)}, {v(t)}")
    for r, t in zip(regs, tmp): A(f"v_add_f32 {v(t)}, 1.0, {v(t)}")
    for r, t in zip(regs, tmp): A(f"v_rcp_f32 {v(t)}, {v(t)}")
    for r, t in zip(regs, tmp): A(f"v_mul_f32 {v(r)}, {v(r)}, {v(t)}")

def mfma16(A, d, a_, b_, c=None):
    A(f"v_mfma_f32_16x16x32_bf16 {v(d,4)}, {v(a_,4)}, {v(b_,4)}, {'0' if c is None else v(c,4)}")

def emit_load_wphi(A, k, dst, s_base, t0, t1):
    vl = k.vlane
    A(f"v_lshrrev_b32 {v(t0)}, 4, {v(vl)}")
    A(f"v_lshlrev_b32 {v(t0)}, 2, {v(t0)}")
    A(f"v_bfe_u32 {v(t1)}, {v(vl)}, 2, 2")
    A(f"v_add_u32 {v(t0)}, {v(t0)}, {v(t1)}")
    A(f"v_lshlrev_b32 {v(t0)}, 6, {v(t0)}")
    A(f"v_and_b32 {v(t1)}, 3, {v(vl)}")
    A(f"v_lshl_add_u32 {v(t0)}, {v(t1)}, 3, {v(t0)}")
    A(f"v_add_u32 {v(t0)}, {s(s_base)}, {v(t0)}")
    for fb in range(2):
        for u in range(2):
            A(f"ds_read_b64_tr_b16 {v(dst+4*fb+2*u,2)}, {v(t0)} offset:{fb*32 + u*1024}")

WS_FLAGS = 15 * MB
F_Z2   = WS_FLAGS + 0
F_KVP  = WS_FLAGS + 512
F_KVR  = WS_FLAGS + 1024
F_GATE = WS_FLAGS + 2048
F_O    = WS_FLAGS + 2304
F_H    = WS_FLAGS + 3328
FLAGS_BYTES = 8192
```

```python
from asmlib import *
from common import f2u, GELU_C1, GELU_C2, LOG2E

def xreduce(A, op, t0, t1, full=True):
    A(f"v_permlane16_swap_b32 {v(t0)}, {v(t1)}")
    A(f"{op} {v(t0)}, {v(t0)}, {v(t1)}")
    A(f"v_mov_b32 {v(t1)}, {v(t0)}")
    A(f"v_permlane32_swap_b32 {v(t0)}, {v(t1)}")
    A(f"{op} {v(t0)}, {v(t0)}, {v(t1)}")
    if full:
        A(f"v_mov_b32 {v(t1)}, {v(t0)}")
        A(f"v_permlane16_swap_b32 {v(t0)}, {v(t1)}")

def gelu_pk(A, base, n, tmp, vc, sc1):
    P = range(0, n, 2)
    for i in P: A(f"v_pk_mul_f32 {v(tmp+i,2)}, {v(base+i,2)}, {v(base+i,2)}")
    for i in P: A(f"v_pk_fma_f32 {v(tmp+i,2)}, {v(tmp+i,2)}, {v(vc,2)}, {s(sc1,2)} op_sel_hi:[1,0,0]")
    for i in P: A(f"v_pk_mul_f32 {v(tmp+i,2)}, {v(base+i,2)}, {v(tmp+i,2)}")
    for i in range(n): A(f"v_exp_f32 {v(tmp+i)}, {v(tmp+i)}")
    for i in P: A(f"v_pk_add_f32 {v(tmp+i,2)}, {v(tmp+i,2)}, {v(vc,2)} op_sel:[0,1] op_sel_hi:[1,1]")
    for i in range(n): A(f"v_rcp_f32 {v(tmp+i)}, {v(tmp+i)}")
    for i in P: A(f"v_pk_mul_f32 {v(base+i,2)}, {v(base+i,2)}, {v(tmp+i,2)}")

def phi(A, p, opos, oneg, e, t0, t1, sL):
    Pr = lambda i: v(p + i)
    A(f"v_max3_f32 {v(t0)}, {Pr(0)}, {Pr(1)}, {Pr(2)}")
    A(f"v_max3_f32 {v(t1)}, -{Pr(0)}, -{Pr(1)}, -{Pr(2)}")
    A(f"v_max3_f32 {v(t0)}, {v(t0)}, {Pr(3)}, {Pr(4)}")
    A(f"v_max3_f32 {v(t1)}, {v(t1)}, -{Pr(3)}, -{Pr(4)}")
    A(f"v_max3_f32 {v(t0)}, {v(t0)}, {Pr(5)}, {Pr(6)}")
    A(f"v_max3_f32 {v(t1)}, {v(t1)}, -{Pr(5)}, -{Pr(6)}")
    A(f"v_max_f32 {v(t0)}, {v(t0)}, {Pr(7)}")
    A(f"v_max_f32 {v(t1)}, {v(t1)}, -{Pr(7)}")
    xreduce(A, "v_max_f32", t0, t1)
    A(f"v_mul_f32 {v(t0)}, {s(sL)}, {v(t0)}")
    A(f"v_mul_f32 {v(t1)}, {s(sL)}, {v(t1)}")
    for i in range(0, 8, 2):
        A(f"v_pk_fma_f32 {v(e+i,2)}, {v(p+i,2)}, {s(sL,2)}, {v(t0,2)} op_sel_hi:[1,0,0] neg_lo:[0,0,1] neg_hi:[0,0,1]")
        A(f"v_pk_fma_f32 {v(e+8+i,2)}, {v(p+i,2)}, {s(sL,2)}, {v(t1,2)} op_sel_hi:[1,0,0] neg_lo:[1,0,1] neg_hi:[1,0,1]")
    for i in range(16): A(f"v_exp_f32 {v(e+i)}, {v(e+i)}")
    A(f"v_pk_add_f32 {v(p,2)}, {v(e,2)}, {v(e+2,2)}")
    A(f"v_pk_add_f32 {v(p+2,2)}, {v(e+8,2)}, {v(e+10,2)}")
    A(f"v_pk_add_f32 {v(p+4,2)}, {v(e+4,2)}, {v(e+6,2)}")
    A(f"v_pk_add_f32 {v(p+6,2)}, {v(e+12,2)}, {v(e+14,2)}")
    A(f"v_pk_add_f32 {v(p,2)}, {v(p,2)}, {v(p+4,2)}")
    A(f"v_pk_add_f32 {v(p+2,2)}, {v(p+2,2)}, {v(p+6,2)}")
    A(f"v_add_f32 {v(t0)}, {v(p)}, {v(p+1)}")
    A(f"v_add_f32 {v(t1)}, {v(p+2)}, {v(p+3)}")
    xreduce(A, "v_add_f32", t0, t1)
    A(f"v_rcp_f32 {v(t0)}, {v(t0)}")
    A(f"v_rcp_f32 {v(t1)}, {v(t1)}")
    for i in range(0, 8, 2):
        A(f"v_pk_mul_f32 {v(e+i,2)}, {v(e+i,2)}, {v(t0,2)} op_sel_hi:[1,0]")
        A(f"v_pk_mul_f32 {v(e+8+i,2)}, {v(e+8+i,2)}, {v(t1,2)} op_sel_hi:[1,0]")
    for i in range(4):
        A(f"v_cvt_pk_bf16_f32 {v(opos+i)}, {v(e+2*i)}, {v(e+2*i+1)}")
        A(f"v_cvt_pk_bf16_f32 {v(oneg+i)}, {v(e+8+2*i)}, {v(e+8+2*i+1)}")

def interleave(*streams):
    out = []; idx = [0]*len(streams)
    while any(i < len(s_) for i, s_ in zip(idx, streams)):
        for j, s_ in enumerate(streams):
            if idx[j] < len(s_): out.append(s_[idx[j]]); idx[j] += 1
    return out

def capture(A, fn):
    save = A.lines; A.lines = []
    fn()
    out = A.lines; A.lines = save
    return out
```

```python
from asmlib import *
import math

OOB = 0x7ff00000

class Panel:
    def __init__(self, name, RB, lds_base, S):
        self.name, self.RB, self.base, self.S = name, RB, lds_base, S
        self.stage = 64 * RB
        self.ppw = self.stage // 1024 // 8
        self.end = lds_base + S * self.stage
        self.nwin = (S * self.stage + 65535) // 65536

class VM:
    def __init__(self): self.ops = []
    def add(self, tag, n=1): self.ops += [tag] * n
    def after(self, tag):
        for i in range(len(self.ops) - 1, -1, -1):
            if self.ops[i] == tag: return len(self.ops) - 1 - i
        return None

def is_vmem(ins): return ins.startswith("buffer_") or ins.startswith("global_")

class Phase:
    def __init__(self, A, name, S, mt, NS, panels, xbase=0):
        self.A, self.name, self.S, self.mt, self.NS, self.panels = A, name, S, mt, NS, panels
        self.xbase = xbase
        self.xstage = 128 * 128
        self.px = 2
        self.np = self.px + sum(p.ppw for p in panels)
        self.nxw = (S * self.xstage + 65535) // 65536
        self.swapf = None
        self.xtb = 2048
        self.pending = []
        self.pending_tags = []

    def bind(self, acc, ntmax, frag, xa, xv, sx_m0, sx_off, s_cnt):
        self.acc, self.ntmax = acc, ntmax
        f = frag
        self.xf = []; self.wf = []
        for st_ in range(2):
            self.xf.append([f + 4*i for i in range(self.mt)]); f += 4*self.mt
        for st_ in range(2):
            self.wf.append([f + 4*i for i in range(ntmax)]); f += 4*ntmax
        self.frag_end = f
        self.xa, self.xv, self.sx_m0, self.sx_off, self.s_cnt = xa, xv, sx_m0, sx_off, s_cnt
        self.wa = [None] * ntmax

    def accb(self, tb, fb): return self.acc + (tb * self.ntmax + fb) * 4

    def dma_groups(self, slot, src):
        G = []
        srd, step = src['x']
        pre = [f"s_add_u32 m0, {s(self.sx_m0)}, {slot*self.xstage}", "s_nop 0"]
        for jj in range(self.px):
            off = f" offset:{jj*1024}" if jj else ""
            G.append(pre + [f"buffer_load_dwordx4 {v(self.xv[jj])}, {s(srd,4)}, {s(self.sx_off)} offen{off} lds"]); pre = []
        G[-1].append(f"s_add_u32 {s(self.sx_off)}, {s(self.sx_off)}, {step}")
        for p in self.panels:
            srd, step = src[p.name]
            if getattr(p, 'pitch', None):
                for jj in range(p.ppw):
                    off = f" offset:{jj*1024}" if jj else ""
                    G.append([f"s_add_u32 m0, {s(p.s_m0)}, {slot*p.stage + jj*(p.pitch - 1024)}", "s_nop 0",
                              f"buffer_load_dwordx4 {v(p.vo[jj])}, {s(srd,4)}, {s(p.s_off)} offen{off} lds"])
                G[-1].append(f"s_add_u32 {s(p.s_off)}, {s(p.s_off)}, {step}")
                continue
            pre = [f"s_add_u32 m0, {s(p.s_m0)}, {slot*p.stage}", "s_nop 0"]
            for jj in range(p.ppw):
                off = f" offset:{jj*1024}" if jj else ""
                G.append(pre + [f"buffer_load_dwordx4 {v(p.vo[jj])}, {s(srd,4)}, {s(p.s_off)} offen{off} lds"]); pre = []
            G[-1].append(f"s_add_u32 {s(p.s_off)}, {s(p.s_off)}, {step if isinstance(step, int) else s(step[0])}")
        return G

    def read_instrs(self, slot, aa, fset, nt):
        def xr(tb):
            off = slot*self.xstage + tb*self.xtb
            return f"ds_read_b128 {v(self.xf[fset][tb],4)}, {v(self.xa[off>>16][aa])} offset:{off & 65535}"
        def wr(fb, u):
            p, regs_ = self.wa[fb]
            if getattr(p, 'pitch', None):
                off = slot*p.stage + fb*2*p.pitch + (32*aa + 4*u)*16
            else:
                off = slot*p.stage + (32*aa + 4*u)*p.RB
            return f"ds_read_b64_tr_b16 {v(self.wf[fset][fb]+2*u,2)}, {v(regs_[off>>16])} offset:{off & 65535}"
        L = [xr(0), wr(0,0), wr(0,1)]
        for fb in range(1, nt): L += [wr(fb,0), wr(fb,1)]
        L += [xr(tb) for tb in range(1, self.mt)]
        return L

    def mfma(self, tb, fb, fset, zero):
        acc = v(self.accb(tb, fb), 4)
        wa, xb = v(self.wf[fset][fb],4), v(self.xf[fset][tb],4)
        if self.swapf and self.swapf(fb): wa, xb = xb, wa
        return f"v_mfma_f32_16x16x32_bf16 {acc}, {wa}, {xb}, {'0' if zero else acc}"

    def substep(self, fset, reads, groups, nt, zero):
        A = self.A
        ms = [self.mfma(tb, fb, fset, zero) for tb in range(self.mt) for fb in range(nt)]
        n = len(ms)
        after = [[] for _ in range(n)]
        span = n if len(reads) > (3*n)//4 else (3*n)//4
        for i, r in enumerate(reads):
            after[min(n-1, i * span // len(reads))].append(r)
        for i, g in enumerate(groups):
            after[min(n-1, (2*i + 1) * n // (2*len(groups)))] += g
        for i, m in enumerate(ms):
            A(m)
            for x in after[i]: A(x)

    def prologue_dma(self, stages, srcf, vm):
        A = self.A
        for st in stages:
            for g in self.dma_groups(st % self.S, srcf(st)):
                for ins in g: A(ins)
            vm.add(('dma', self.name, st), self.np)

    def mainloop(self, nk, srcf, nt, vm, pre=None, post=None, switch=None, k0=0, k1=None, extra=None, final=True):
        A = self.A
        S, NS = self.S, self.NS
        k1 = nk if k1 is None else k1
        pre = pre or {}; post = post or {}; switch = switch or {}
        tag = lambda st: ('dma', self.name, st)
        if k0 == 0:
            A(f"s_waitcnt vmcnt({vm.after(tag(0))})")
            A("s_barrier")
            if 'start' in post: post['start']()
            for ins in self.read_instrs(0, 0, 0, nt): A(ins)
        def track(groups, tags):
            for g, tg in zip(groups, tags):
                for ins in g:
                    if is_vmem(ins): vm.add(tg)
        def emit(k):
            has_next = k + 1 < nk
            dma = k + S if k + S < nk else None
            slot, nslot = k % S, (k + 1) % S
            if NS == 2:
                A("s_waitcnt lgkmcnt(0)")
                self.substep(0, self.read_instrs(slot, 1, 1, nt), self.pending, nt, k == 0)
                track(self.pending, self.pending_tags)
                self.pending, self.pending_tags = [], []
            last_set = 1 if NS == 2 else (k & 1)
            next_set = 0 if NS == 2 else ((k + 1) & 1)
            if k in pre: pre[k]()
            if has_next:
                n = vm.after(tag(k + 1))
                assert n is not None and n <= 63, (self.name, k, n)
                A(f"s_waitcnt vmcnt({n}) lgkmcnt(0)")
                A("s_barrier")
                if k in post: post[k]()
                rd = self.read_instrs(nslot, 0, next_set, nt)
                groups, tags = [], []
                if dma is not None:
                    if dma in switch: switch[dma]()
                    groups = self.dma_groups(slot, srcf(dma)); tags = [tag(dma)] * len(groups)
                ex = extra(k) if extra else []
                if NS == 2:
                    h = (len(groups) + 1) // 2
                    now, nowt = groups[:h], tags[:h]
                    self.pending = groups[h:] + [g for _, g in ex]
                    self.pending_tags = tags[h:] + [tg for tg, _ in ex]
                else:
                    now = groups + [g for _, g in ex]; nowt = tags + [tg for tg, _ in ex]
                self.substep(last_set, rd, now, nt, NS == 1 and k == 0)
                track(now, nowt)
            else:
                A("s_waitcnt lgkmcnt(0)")
                if k in post: post[k]()
                self.substep(last_set, [], [], nt, NS == 1 and k == 0)
        texts = []
        save = A.lines
        for k in range(k0, k1):
            A.lines = []
            emit(k)
            texts.append(A.lines)
        A.lines = save
        U = S if (NS == 2 or S % 2 == 0) else 2*S
        i = 0; n_it = len(texts)
        while i < n_it:
            m = 1
            while i + (m + 1) * U <= n_it and all(texts[i + m*U + u] == texts[i + u] for u in range(U)): m += 1
            if m >= 2:
                lab = A.newlabel(f"{self.name}_loop")
                A(f"s_mov_b32 {s(self.s_cnt)}, {m}")
                A(".p2align 3")
                A.label(lab)
                for u in range(U): A.lines += texts[i + u]
                A(f"s_sub_u32 {s(self.s_cnt)}, {s(self.s_cnt)}, 1")
                A(f"s_cmp_lg_u32 {s(self.s_cnt)}, 0")
                A(f"s_cbranch_scc1 {lab}")
                i += m * U
            else:
                A.lines += texts[i]; i += 1
        if final and k1 == nk:
            assert not self.pending
```

```python
import sys, math
from common import *
from phase3 import *
from numer import *
from hazard import fix

NAME = "gated_mix__linear_kernel_hedgehog__mixer_gmlp__prompt_kernel"
SC = " sc1"
SPIN_CAP = 400000
WS_GATE16 = WS_GATE

SW, ST, ST2, ST3, SCNT = 3, 4, 5, 6, 7
SRD_WS, SRD_X, SRD_W1, SRD_W2, SRD_T, SRD_U = 8, 12, 16, 20, 24, 28
SX_M0, SX_OFF, W1_M0, W1_OFF, W2_M0, W2_OFF = 32, 33, 34, 35, 36, 37
T_OFF, T_STEP = 38, 39
S_TB1, S_CT, S_TB, S_J, S_WM, S_WN1 = 40, 41, 42, 43, 44, 45
SL = 46
PTR = dict(x=48, wqkv=50, wphi=52, wo=54, bx=56, win=58, wsp=60, bsp=62, wout=64, gatew=66, out=68, dbg=70, ws=72)
S_PATH, S_SPIN, S_PUB, S_ROW0, S_C0, S_C1 = 74, 75, 76, 77, 78, 79
SC1 = 80
S_WK, S_WN, T_MAX = 82, 83, 84
TS0 = 86
NSGPR = 96

L_VR = 0; VL = 1; T = list(range(2, 10))
V_TD, V_TO, V_FL, V_PA = 10, 11, 12, 13
V_DMA = 14
RD1 = 20
VTOK, VG, VB, XAW, VC, VA0, VA1 = 20, 21, 23, 25, 26, 28, 29
XA2, WZ, WQ = 30, 31, 35
L_SW0, L_C256, L_C128 = 37, 38, 39
ACC = 40
DEF, VDA = 216, 248

PHI, PHI2, MISC = 147456, 155648, 159744
STAMPS = False
DBG = False
POLLID = [0]

def dbg_inc(A, idx):
    if not DBG: return
    srd(A, SRD_U, 'dbg', 256)
    A(f"v_mov_b32 {v(T[6])}, 1"); A(f"v_mov_b32 {v(T[7])}, {idx*4}")
    A("s_mov_b64 exec, 1")
    A(f"buffer_atomic_add {v(T[6])}, {v(T[7])}, {s(SRD_U,4)}, 0 offen")
    A("s_mov_b64 exec, -1")

def dbg_nan(A, reg, idx):
    if not DBG: return
    lab = A.newlabel('dn')
    A(f"v_cmp_u_f32 vcc, {v(reg)}, {v(reg)}")
    A(f"s_cmp_eq_u64 vcc, 0")
    A(f"s_cbranch_scc1 {lab}")
    dbg_inc(A, idx)
    A.label(lab)

def srd(A, r, p, nbytes, off=0):
    b = PTR[p]
    if off:
        A(f"s_add_u32 {s(r)}, {s(b)}, {off}")
        A(f"s_addc_u32 {s(r+1)}, {s(b+1)}, 0")
        A(f"s_and_b32 {s(r+1)}, {s(r+1)}, 0xffff")
    else:
        A(f"s_mov_b32 {s(r)}, {s(b)}")
        A(f"s_and_b32 {s(r+1)}, {s(b+1)}, 0xffff")
    A(f"s_mov_b32 {s(r+2)}, {nbytes}")
    A(f"s_mov_b32 {s(r+3)}, 0x20000")

def stamp(A, i):
    if not STAMPS: return
    lab = A.newlabel("stp")
    A(f"s_cmp_lg_u32 {s(SW)}, 0")
    A(f"s_cbranch_scc1 {lab}")
    A(f"s_memrealtime {s(TS0,2)}")
    A(f"s_memtime {s(TS0+2,2)}")
    A(f"s_lshl_b32 {s(TS0+4)}, s2, 9")
    A(f"s_add_u32 {s(TS0+4)}, {s(TS0+4)}, {WS_TS + i*16}")
    A("s_waitcnt lgkmcnt(0)")
    A(f"v_mov_b32 {v(T[6])}, {s(TS0)}")
    A(f"v_mov_b32 {v(T[7])}, {s(TS0+2)}")
    A(f"v_mov_b32 {v(T[5])}, 0")
    A("s_mov_b64 exec, 1")
    A(f"buffer_store_dwordx2 {v(T[6],2)}, {v(T[5])}, {s(SRD_WS,4)}, {s(TS0+4)} offen")
    A("s_mov_b64 exec, -1")
    A.label(lab)

class KK: vlane = VL

def only_waves(A, lo, hi, body):
    lab = A.newlabel("ow")
    if lo == hi - 1:
        A(f"s_cmp_lg_u32 {s(SW)}, {lo}")
        A(f"s_cbranch_scc1 {lab}")
    else:
        A(f"s_sub_u32 {s(S_SPIN)}, {s(SW)}, {lo}")
        A(f"s_cmp_ge_u32 {s(S_SPIN)}, {hi-lo}")
        A(f"s_cbranch_scc1 {lab}")
    body()
    A.label(lab)
def wave0_only(A, body): only_waves(A, 0, 1, body)

def poll_issue(A):
    wave0_only(A, lambda: A(f"buffer_load_dword {v(V_FL)}, {v(V_PA)}, {s(SRD_WS,4)}, 0 offen{SC}"))

def poll_check(A, nafter):
    def body():
        ok = A.newlabel("pok"); sp = A.newlabel("psp")
        A(f"s_waitcnt vmcnt({nafter})")
        A(f"v_cmp_ne_u32 vcc, 0, {v(V_FL)}")
        A(f"s_cmp_eq_u64 vcc, -1")
        A(f"s_cbranch_scc1 {ok}")
        POLLID[0] += 1
        dbg_inc(A, 4 + POLLID[0])
        A(f"s_mov_b32 {s(S_SPIN)}, {SPIN_CAP}")
        A.label(sp)
        A("s_sleep 1")
        A(f"buffer_load_dword {v(V_FL)}, {v(V_PA)}, {s(SRD_WS,4)}, 0 offen{SC}")
        A("s_waitcnt vmcnt(0)")
        A(f"v_cmp_ne_u32 vcc, 0, {v(V_FL)}")
        A(f"s_cmp_eq_u64 vcc, -1")
        A(f"s_cbranch_scc1 {ok}")
        A(f"s_sub_u32 {s(S_SPIN)}, {s(S_SPIN)}, 1")
        A(f"s_cmp_lg_u32 {s(S_SPIN)}, 0")
        A(f"s_cbranch_scc1 {sp}")
        A.label(ok)
    wave0_only(A, body)

def publish(A):
    def body():
        A(f"v_mov_b32 {v(T[6])}, 1")
        A(f"v_mov_b32 {v(T[7])}, 0")
        A("s_mov_b64 exec, 1")
        A(f"buffer_store_dword {v(T[6])}, {v(T[7])}, {s(SRD_WS,4)}, {s(S_PUB)} offen{SC}")
        A("s_mov_b64 exec, -1")
    wave0_only(A, body)

def root_load(A):
    A(f"v_mov_b32 {v(T[7])}, 0")
    A(f"buffer_load_dword {v(V_FL)}, {v(T[7])}, {s(SRD_U,4)}, 0 offen{SC}")
def issue_root_load(A):
    srd(A, SRD_U, 'dbg', 256)
    only_waves(A, 0, 4, lambda: root_load(A))
def wait_root(A):
    ok = A.newlabel("rok"); sp = A.newlabel("rsp")
    A("s_waitcnt vmcnt(0)")
    A(f"v_cmp_eq_u32 vcc, 16, {v(V_FL)}")
    A(f"s_cbranch_vccnz {ok}")
    A(f"s_mov_b32 {s(S_SPIN)}, {SPIN_CAP}")
    A.label(sp)
    A("s_sleep 1")
    root_load(A)
    A("s_waitcnt vmcnt(0)")
    A(f"v_cmp_eq_u32 vcc, 16, {v(V_FL)}")
    A(f"s_cbranch_vccnz {ok}")
    A(f"s_sub_u32 {s(S_SPIN)}, {s(S_SPIN)}, 1")
    A(f"s_cmp_lg_u32 {s(S_SPIN)}, 0")
    A(f"s_cbranch_scc1 {sp}")
    A.label(ok)

def sel_by_wave(A, dst, vals):
    A(f"s_mov_b32 {s(dst)}, {vals[0]}")
    for w in range(1, 8):
        if vals[w] == vals[0]: continue
        A(f"s_cmp_eq_u32 {s(SW)}, {w}")
        A(f"s_cselect_b32 {s(dst)}, {vals[w]}, {s(dst)}")

def touch_srd(A, ptrs, sizes):
    sel_by_wave(A, SRD_T, [s(PTR[p]) for p in ptrs])
    sel_by_wave(A, SRD_T+1, [s(PTR[p]+1) for p in ptrs])
    A(f"s_and_b32 {s(SRD_T+1)}, {s(SRD_T+1)}, 0xffff")
    sel_by_wave(A, SRD_T+2, sizes)
    A(f"s_mov_b32 {s(SRD_T+3)}, 0x20000")

def touch_group():
    return [f"buffer_load_dword {v(V_TD)}, {v(V_TO)}, {s(SRD_T,4)}, {s(T_OFF)} offen",
            f"s_add_u32 {s(T_OFF)}, {s(T_OFF)}, {s(T_STEP)}",
            f"s_min_u32 {s(T_OFF)}, {s(T_OFF)}, {s(T_MAX)}"]

def load_wphi(A, dst, s_base, t0, t1):
    emit_load_wphi(A, KK, dst, s_base, t0, t1)

def setup_m0(A, ph):
    A(f"s_lshl_b32 {s(ph.sx_m0)}, {s(SW)}, 11")
    for p in ph.panels:
        A(f"s_mul_i32 {s(p.s_m0)}, {s(SW)}, {p.ppw*1024}")
        A(f"s_add_u32 {s(p.s_m0)}, {s(p.s_m0)}, {p.base}")

def x_dma(A, ph, stride):
    A(f"s_lshl_b32 {s(ST)}, {s(SW)}, 4")
    A(f"s_add_u32 {s(ST)}, {s(ST)}, {s(S_ROW0)}")
    A(f"s_mul_i32 {s(ph.sx_off)}, {s(ST)}, {stride}")
    A(f"v_mul_u32_u24 {v(T[0])}, {stride}, {v(L_VR)}")
    A(f"v_add_u32 {v(ph.xv[0])}, {v(T[0])}, {v(L_SW0)}")
    A(f"v_xor_b32 {v(ph.xv[1])}, 64, {v(L_SW0)}")
    A(f"v_add_u32 {v(T[0])}, {8*stride - 1024}, {v(T[0])}")
    A(f"v_add_u32 {v(ph.xv[1])}, {v(ph.xv[1])}, {v(T[0])}")

def w256_dma(A, p, stride, s_c0):
    A(f"s_mul_i32 {s(p.s_off)}, {s(SW)}, {8*stride}")
    A(f"s_add_u32 {s(p.s_off)}, {s(p.s_off)}, {s(s_c0)}")
    A(f"v_lshrrev_b32 {v(T[0])}, 4, {v(VL)}")
    A(f"v_mul_u32_u24 {v(T[0])}, {stride}, {v(T[0])}")
    A(f"v_add_u32 {v(p.vo[0])}, {v(T[0])}, {v(L_C256)}")
    A(f"v_add_u32 {v(p.vo[1])}, {4*stride - 1024}, {v(p.vo[0])}")

def w128_dma(A, p, stride, s_c0):
    A(f"s_mul_i32 {s(p.s_off)}, {s(SW)}, {8*stride}")
    A(f"s_add_u32 {s(p.s_off)}, {s(p.s_off)}, {s(s_c0)}")
    A(f"v_mul_u32_u24 {v(T[0])}, {stride}, {v(L_VR)}")
    A(f"v_add_u32 {v(p.vo[0])}, {v(T[0])}, {v(L_C128)}")

def x_read(A, dst0, dst1, rows_per_wm, s_wk):
    t = T
    A(f"v_and_b32 {v(t[0])}, 15, {v(VL)}")
    A(f"s_mul_i32 {s(ST)}, {s(S_WM)}, {rows_per_wm*128}")
    A(f"v_lshlrev_b32 {v(t[0])}, 7, {v(t[0])}")
    A(f"v_add_u32 {v(t[0])}, {s(ST)}, {v(t[0])}")
    A(f"v_bfe_u32 {v(t[1])}, {v(VL)}, 1, 3")
    A(f"v_lshrrev_b32 {v(t[2])}, 4, {v(VL)}")
    if s_wk is not None:
        A(f"s_lshl_b32 {s(ST)}, {s(s_wk)}, 2")
        A(f"v_add_u32 {v(t[2])}, {s(ST)}, {v(t[2])}")
    A(f"v_xor_b32 {v(t[2])}, {v(t[2])}, {v(t[1])}")
    A(f"v_lshl_add_u32 {v(dst0)}, {v(t[2])}, 4, {v(t[0])}")
    if dst1 is not None: A(f"v_xor_b32 {v(dst1)}, 64, {v(dst0)}")

def w_read(A, p, regs_, s_chunk, nblk, s_wk):
    t0, t1, t2 = T[:3]
    RB = p.RB
    A(f"v_lshrrev_b32 {v(t0)}, 4, {v(VL)}")
    A(f"v_lshlrev_b32 {v(t0)}, 3, {v(t0)}")
    A(f"v_bfe_u32 {v(t1)}, {v(VL)}, 2, 2")
    A(f"v_add_u32 {v(t0)}, {v(t0)}, {v(t1)}")
    if s_wk is not None:
        A(f"s_lshl_b32 {s(ST)}, {s(s_wk)}, 5")
        A(f"v_add_u32 {v(t0)}, {s(ST)}, {v(t0)}")
    A(f"v_lshlrev_b32 {v(t0)}, {int(math.log2(RB))}, {v(t0)}")
    A(f"v_add_u32 {v(t0)}, {p.base}, {v(t0)}")
    A(f"v_and_b32 {v(t2)}, 3, {v(VL)}")
    A(f"v_lshl_add_u32 {v(t0)}, {v(t2)}, 3, {v(t0)}")
    A(f"v_bfe_u32 {v(t2)}, {v(VL)}, 4, 1")
    if RB >= 256:
        A(f"v_lshl_or_b32 {v(t1)}, {v(t2)}, 2, {v(t1)}")
    else:
        A(f"v_lshrrev_b32 {v(t1)}, 1, {v(t1)}")
        A(f"v_lshl_or_b32 {v(t1)}, {v(t2)}, 1, {v(t1)}")
    A(f"v_xor_b32 {v(t1)}, {s(s_chunk)}, {v(t1)}")
    for i in range(nblk):
        if i == 0: A(f"v_lshl_add_u32 {v(regs_[0][0])}, {v(t1)}, 5, {v(t0)}")
        else: A(f"v_xor_b32 {v(regs_[i][0])}, {i*32}, {v(regs_[0][0])}")
    for i in range(nblk):
        for w in range(1, len(regs_[i])):
            A(f"v_add_u32 {v(regs_[i][w])}, {65536*w}, {v(regs_[i][0])}")

def exchange(A, name, lo, n, slot_addr, first_barrier=True):
    hi = lo + n
    vad = T[0]
    if first_barrier: A("s_barrier")
    A(f"s_xor_b32 {s(ST2)}, {s(SW)}, 2")
    slot_addr(ST, ST2)
    A(f"v_lshl_add_u32 {v(vad)}, {v(VL)}, 4, {s(ST)}")
    l1, l2 = A.newlabel(name + "_s"), A.newlabel(name + "_d")
    A(f"s_cmp_eq_u32 {s(S_WK)}, 0")
    A(f"s_cbranch_scc0 {l1}")
    for g_ in range(n//4): A(f"ds_write_b128 {v(vad)}, {v(hi+4*g_,4)} offset:{g_*1024}")
    A(f"s_branch {l2}")
    A.label(l1)
    for g_ in range(n//4): A(f"ds_write_b128 {v(vad)}, {v(lo+4*g_,4)} offset:{g_*1024}")
    for i in range(0, n, 2): A(f"v_mov_b64 {v(lo+i,2)}, {v(hi+i,2)}")
    A.label(l2)
    slot_addr(ST, SW)
    A(f"v_lshl_add_u32 {v(vad)}, {v(VL)}, 4, {s(ST)}")
    A("s_waitcnt lgkmcnt(0)")
    A("s_barrier")
    for g_ in range(n//4): A(f"ds_read_b128 {v(hi+4*g_,4)}, {v(vad)} offset:{g_*1024}")
    def finish():
        A("s_waitcnt lgkmcnt(0)")
        for i in range(0, n, 2): A(f"v_pk_add_f32 {v(lo+i,2)}, {v(lo+i,2)}, {v(hi+i,2)}")
    return finish

def gen(stamps=False, dbg=False):
    global STAMPS, DBG
    STAMPS = stamps; DBG = dbg; POLLID[0] = 0
    A = Asm()
    t = T; vl = VL; sw = SW; st = ST; st2 = ST2; st3 = ST3
    END = "L_end"
    A.lines.append(kernel_header(NAME))
    A("s_cmp_ge_u32 s2, 256")
    A(f"s_cbranch_scc1 {END}")
    A("s_load_dwordx16 s[48:63], s[0:1], 0")
    A("s_load_dwordx8 s[64:71], s[0:1], 64")
    A("s_load_dwordx2 s[72:73], s[0:1], 96")
    A(f"v_lshrrev_b32 {v(t[0])}, 6, v0")
    A(f"v_and_b32 {v(vl)}, 63, v0")
    A(f"v_readfirstlane_b32 {s(sw)}, {v(t[0])}")
    A(f"v_mov_b32 {v(V_PA)}, v0")
    A(f"s_and_b32 {s(st)}, s2, 1")
    A(f"s_lshl_b32 {s(S_TB1)}, {s(st)}, 3")
    A(f"s_bfe_u32 {s(st)}, s2, 0x30003")
    A(f"s_add_u32 {s(S_TB1)}, {s(S_TB1)}, {s(st)}")
    A(f"s_bfe_u32 {s(st)}, s2, 0x20001")
    A(f"s_lshl_b32 {s(S_CT)}, {s(st)}, 2")
    A(f"s_lshr_b32 {s(st)}, s2, 6")
    A(f"s_add_u32 {s(S_CT)}, {s(S_CT)}, {s(st)}")
    A(f"s_and_b32 {s(S_TB)}, s2, 3")
    A(f"s_lshl_b32 {s(S_TB)}, {s(S_TB)}, 2")
    A(f"s_bfe_u32 {s(st)}, s2, 0x20003")
    A(f"s_add_u32 {s(S_TB)}, {s(S_TB)}, {s(st)}")
    A(f"s_bfe_u32 {s(S_J)}, s2, 0x10002")
    A(f"s_lshl_b32 {s(S_J)}, {s(S_J)}, 3")
    A(f"s_lshr_b32 {s(st)}, s2, 5")
    A(f"s_add_u32 {s(S_J)}, {s(S_J)}, {s(st)}")
    A(f"s_mov_b32 {s(SL)}, {hex(f2u(LOG2E))}")
    A(f"s_mov_b32 {s(SC1)}, {hex(f2u(GELU_C1))}")
    A(f"s_and_b32 {s(S_WM)}, {s(sw)}, 1")
    A(f"s_lshr_b32 {s(S_WN1)}, {s(sw)}, 1")
    A(f"s_bfe_u32 {s(S_WK)}, {s(sw)}, 0x10001")
    A(f"s_lshr_b32 {s(S_WN)}, {s(sw)}, 2")
    A(f"v_lshrrev_b32 {v(L_VR)}, 3, {v(vl)}")
    A(f"v_lshrrev_b32 {v(t[1])}, 4, {v(vl)}")
    A(f"v_xor_b32 {v(L_SW0)}, {v(t[1])}, {v(vl)}")
    A(f"v_and_b32 {v(L_SW0)}, 7, {v(L_SW0)}")
    A(f"v_lshlrev_b32 {v(L_SW0)}, 4, {v(L_SW0)}")

    PW1 = Panel('w', 512, 49152, 3)
    PW1.vo = [V_DMA+2+i for i in range(4)]; PW1.s_m0, PW1.s_off = W1_M0, W1_OFF
    p1 = Phase(A, 't1', 3, 4, 2, [PW1])
    F1 = ACC + 64
    p1.bind(ACC, 4, F1, [[RD1, RD1+1]], [V_DMA, V_DMA+1], SX_M0, SX_OFF, SCNT)
    wa1 = [[RD1+2+2*i, RD1+3+2*i] for i in range(4)]
    p1.wa = [(PW1, wa1[i]) for i in range(4)]

    PZ = Panel('z', 256, 49152, 3); PQ = Panel('q', 128, 98304, 3)
    PZ.vo = [V_DMA+2, V_DMA+3]; PZ.s_m0, PZ.s_off = W1_M0, W1_OFF
    PQ.vo = [V_DMA+4]; PQ.s_m0, PQ.s_off = W2_M0, W2_OFF
    p2 = Phase(A, 't23', 3, 4, 1, [PZ, PQ])
    F2 = ACC + 96
    p2.bind(ACC, 6, F2, [[XA2]], [V_DMA, V_DMA+1], SX_M0, SX_OFF, SCNT)
    wz = [[WZ+i] for i in range(4)]; wq = [[WQ+i] for i in range(2)]

    PW4 = Panel('w', 256, 65536, 4)
    PW4.pitch = 1088; PW4.stage = 14*1088; PW4.end = PW4.base + 4*PW4.stage
    PW4.vo = [V_DMA+2, V_DMA+3]; PW4.s_m0, PW4.s_off = W1_M0, W1_OFF
    p4 = Phase(A, 't4', 4, 4, 1, [PW4])
    F4 = ACC + 64
    p4.bind(ACC, 4, F4, [[XA2]], [V_DMA, V_DMA+1], SX_M0, SX_OFF, SCNT)
    p4.wa = [(PW4, wz[0]) for i in range(4)]

    PW5 = Panel('w', 128, 98304, 6)
    PW5.vo = [V_DMA+2]; PW5.s_m0, PW5.s_off = W1_M0, W1_OFF
    p5 = Phase(A, 't5', 6, 4, 1, [PW5])
    F5 = ACC + 32
    p5.bind(ACC, 2, F5, [[XA2], [XAW]], [V_DMA, V_DMA+1], SX_M0, SX_OFF, SCNT)
    p5.xtb = 256
    p5.wa = [(PW5, wq[i]) for i in range(2)]

    A("s_waitcnt lgkmcnt(0)")
    srd(A, SRD_WS, 'ws', WS_END)
    stamp(A, 0)
    srd(A, SRD_X, 'x', 2048*1024*2)
    srd(A, SRD_U, 'wphi', 32*32*32*2)
    A(f"s_cmp_eq_u32 {s(S_CT)}, 15")
    A(f"s_cbranch_scc1 L_aux")

    A(f"s_lshl_b32 {s(S_ROW0)}, {s(S_TB1)}, 7")
    setup_m0(A, p1)
    x_dma(A, p1, 2048)
    def w512_dma(stride, colmap):
        A(f"s_mul_i32 {s(W1_OFF)}, {s(sw)}, {8*stride}")
        A(f"s_and_b32 {s(st)}, {s(sw)}, 1")
        A(f"s_lshl_b32 {s(st)}, {s(st)}, 2")
        for jj in range(4):
            A(f"v_lshrrev_b32 {v(t[0])}, 5, {v(vl)}")
            if jj: A(f"v_add_u32 {v(t[0])}, {2*jj}, {v(t[0])}")
            A(f"v_bfe_u32 {v(t[2])}, {v(vl)}, 1, 4")
            A(f"v_and_b32 {v(t[3])}, 3, {v(t[0])}")
            A(f"v_or_b32 {v(t[3])}, {s(st)}, {v(t[3])}")
            A(f"v_xor_b32 {v(t[2])}, {v(t[2])}, {v(t[3])}")
            colmap(t[3], t[2])
            A(f"v_and_b32 {v(t[1])}, 1, {v(vl)}")
            A(f"v_lshl_add_u32 {v(t[3])}, {v(t[1])}, 4, {v(t[3])}")
            A(f"v_mul_u32_u24 {v(t[0])}, {stride}, {v(t[0])}")
            if jj:
                A(f"v_add_u32 {v(t[0])}, {v(t[0])}, {v(t[3])}")
                A(f"v_subrev_u32 {v(PW1.vo[jj])}, {jj*1024}, {v(t[0])}")
            else:
                A(f"v_add_u32 {v(PW1.vo[jj])}, {v(t[0])}, {v(t[3])}")
    A(f"s_cmp_ge_u32 {s(S_CT)}, 8")
    A(f"s_cbranch_scc1 L_z2a")
    A(f"s_mov_b32 {s(S_PATH)}, 0")
    srd(A, SRD_W1, 'wqkv', 1024*3072*2)
    A(f"s_lshl_b32 {s(S_C0)}, {s(S_CT)}, 2")
    def cm_kv(vd, vq):
        A(f"v_lshrrev_b32 {v(vd)}, 2, {v(vq)}")
        A(f"v_add_u32 {v(vd)}, {s(S_C0)}, {v(vd)}")
        A(f"v_lshlrev_b32 {v(vd)}, 6, {v(vd)}")
        A(f"v_and_b32 {v(t[5])}, 1, {v(vq)}")
        A(f"v_lshl_add_u32 {v(vd)}, {v(t[5])}, 5, {v(vd)}")
        A(f"v_bfe_u32 {v(t[5])}, {v(vq)}, 1, 1")
        A(f"v_lshl_add_u32 {v(vd)}, {v(t[5])}, 11, {v(vd)}")
        A(f"v_add_u32 {v(vd)}, 2048, {v(vd)}")
    w512_dma(6144, cm_kv)
    A(f"s_mov_b32 {s(S_C1)}, {64*6144}")
    A("s_branch L_t1go")
    A.label("L_z2a")
    A(f"s_mov_b32 {s(S_PATH)}, 1")
    srd(A, SRD_W1, 'win', 1024*3584*2)
    A(f"s_sub_u32 {s(st2)}, {s(S_CT)}, 8")
    A(f"s_lshl_b32 {s(S_C0)}, {s(st2)}, 9")
    A(f"s_add_u32 {s(S_C0)}, {s(S_C0)}, {1792*2}")
    def cm_z2(vd, vq):
        A(f"v_lshlrev_b32 {v(vd)}, 5, {v(vq)}")
        A(f"v_add_u32 {v(vd)}, {s(S_C0)}, {v(vd)}")
    w512_dma(7168, cm_z2)
    A(f"s_mov_b32 {s(S_C1)}, {64*7168}")
    A.label("L_t1go")
    src1 = lambda stg: dict(x=(SRD_X, 128), w=(SRD_W1, (S_C1,)))
    vm = VM()
    stamp(A, 1)
    p1.prologue_dma(range(3), src1, vm)

    def phi_loads(kv):
        A(f"s_and_b32 {s(st)}, {s(sw)}, 3")
        A(f"s_lshl_b32 {s(st)}, {s(st)}, 10")
        A(f"s_add_u32 m0, {s(st)}, {PHI2}")
        A(f"s_lshl_b32 {s(st2)}, {s(S_J)}, 12")
        A(f"s_add_u32 {s(st)}, {s(st)}, {s(st2)}")
        A(f"v_lshlrev_b32 {v(t[0])}, 4, {v(vl)}")
        A(f"buffer_load_dwordx4 {v(t[0])}, {s(SRD_U,4)}, {s(st)} offen lds")
        if kv:
            A(f"s_lshl_b32 {s(st)}, {s(sw)}, 10")
            A(f"s_add_u32 m0, {s(st)}, {PHI}")
            A(f"s_and_b32 {s(st2)}, {s(S_CT)}, 7")
            A(f"s_lshl_b32 {s(st2)}, {s(st2)}, 13")
            A(f"s_add_u32 {s(st)}, {s(st)}, {s(st2)}")
            A(f"buffer_load_dwordx4 {v(t[0])}, {s(SRD_U,4)}, {s(st)} offen lds")
    phi_loads(True)
    vm.add('phi', 2)
    def lane_consts():
        A(f"s_and_b32 {s(st)}, {s(sw)}, 1")
        A(f"s_lshl_b32 {s(st2)}, {s(st)}, 2")
        A(f"v_lshrrev_b32 {v(t[0])}, 4, {v(vl)}")
        A(f"v_or_b32 {v(t[0])}, {s(st2)}, {v(t[0])}")
        A(f"v_bfe_u32 {v(t[1])}, {v(vl)}, 1, 3")
        A(f"v_xor_b32 {v(t[0])}, {v(t[0])}, {v(t[1])}")
        A(f"v_and_b32 {v(t[1])}, 1, {v(vl)}")
        A(f"v_lshlrev_b32 {v(t[1])}, 4, {v(t[1])}")
        A(f"v_lshl_add_u32 {v(L_C256)}, {v(t[0])}, 5, {v(t[1])}")
        A(f"v_cmp_eq_u32 vcc, 7, {v(t[0])}")
        A(f"v_mov_b32 {v(t[2])}, {OOB}")
        A(f"v_cndmask_b32 {v(L_C256)}, {v(L_C256)}, {v(t[2])}, vcc")
        A(f"s_lshl_b32 {s(st2)}, {s(st)}, 1")
        A(f"v_bfe_u32 {v(t[0])}, {v(vl)}, 4, 1")
        A(f"v_or_b32 {v(t[0])}, {s(st2)}, {v(t[0])}")
        A(f"v_bfe_u32 {v(t[2])}, {v(vl)}, 1, 2")
        A(f"v_xor_b32 {v(t[0])}, {v(t[0])}, {v(t[2])}")
        A(f"v_lshl_add_u32 {v(L_C128)}, {v(t[0])}, 5, {v(t[1])}")
        x_read(A, XA2, None, 64, S_WK)
        A(f"s_lshl_b32 {s(st2)}, {s(S_WN)}, 2")
        w_read(A, PZ, wz, st2, 4, S_WK)
        A(f"s_lshl_b32 {s(st2)}, {s(S_WN)}, 1")
        w_read(A, PQ, wq, st2, 2, S_WK)
    lane_consts()
    def touch_setup_t1():
        touch_srd(A, ['x', 'wqkv', 'win', 'win', 'wqkv', 'x', 'x', 'x'],
                  [2048*2048, 1024*6144, 1024*7168, 1024*7168, 1024*6144, 0, 0, 0])
        sel_by_wave(A, T_STEP, [128, 64*6144, 64*7168, 64*7168, 64*6144, 0, 0, 0])
        A(f"v_lshrrev_b32 {v(t[0])}, 3, {v(vl)}")
        sel_by_wave(A, st, [7, 7, 6, 6, 3, 0, 0, 0])
        A(f"v_min_u32 {v(t[0])}, {s(st)}, {v(t[0])}")
        sel_by_wave(A, st, [2048, 128, 128, 128, 128, 0, 0, 0])
        A(f"v_mul_lo_u32 {v(V_TO)}, {v(t[0])}, {s(st)}")
        A(f"s_lshr_b32 {s(st2)}, s2, 2")
        A(f"s_and_b32 {s(st3)}, s2, 3")
        A(f"s_mul_i32 {s(T_OFF)}, s2, {8*2048}")
        def alt(w, stride, base, per):
            A(f"s_mul_i32 {s(S_SPIN)}, {s(st2)}, {stride}")
            A(f"s_mul_i32 {s(S_PUB)}, {s(st3)}, {per*128}")
            A(f"s_add_u32 {s(S_SPIN)}, {s(S_SPIN)}, {s(S_PUB)}")
            if base: A(f"s_add_u32 {s(S_SPIN)}, {s(S_SPIN)}, {base}")
            A(f"s_cmp_eq_u32 {s(sw)}, {w}")
            A(f"s_cselect_b32 {s(T_OFF)}, {s(S_SPIN)}, {s(T_OFF)}")
        alt(1, 6144, 2048, 8); alt(2, 7168, 3584, 7); alt(3, 7168, 0, 7); alt(4, 6144, 0, 4)
        A(f"s_mul_i32 {s(T_MAX)}, {s(T_STEP)}, 15")
        A(f"s_add_u32 {s(T_MAX)}, {s(T_MAX)}, {s(T_OFF)}")
        A(f"s_mul_i32 {s(S_SPIN)}, {s(T_STEP)}, 3")
        A(f"s_cmp_lt_u32 {s(sw)}, 3")
        A(f"s_cselect_b32 {s(S_SPIN)}, {s(S_SPIN)}, 0")
        A(f"s_add_u32 {s(T_OFF)}, {s(T_OFF)}, {s(S_SPIN)}")
    touch_setup_t1()
    for _ in range(3):
        for ins in touch_group(): A(ins)
        vm.add('touch')
    x_read(A, RD1, RD1+1, 64, None)
    A(f"s_lshl_b32 {s(st2)}, {s(S_WN1)}, 2")
    w_read(A, PW1, wa1, st2, 4, None)
    ex1 = lambda k: [('touch', touch_group())] if k < 13 else []
    snap = list(vm.ops)
    A(f"s_cmp_eq_u32 {s(S_PATH)}, 0")
    A(f"s_cbranch_scc0 L_z2loop")
    p1.swapf = lambda fb: fb >= 2
    p1.mainloop(16, src1, 4, vm, post={'start': lambda: stamp(A, 2)}, extra=ex1)
    p1.swapf = None
    A("s_branch L_t1done")
    A.label("L_z2loop")
    vm.ops = list(snap)
    p1.mainloop(16, src1, 4, vm, post={'start': lambda: stamp(A, 2)}, extra=ex1)
    A.label("L_t1done")
    stamp(A, 3)
    A("s_barrier")

    A.label("L_t23pro")
    A(f"s_lshl_b32 {s(S_ROW0)}, {s(S_TB)}, 7")
    srd(A, SRD_W1, 'win', 1024*3584*2)
    srd(A, SRD_W2, 'wqkv', 1024*3072*2)
    setup_m0(A, p2)
    x_dma(A, p2, 2048)
    A(f"s_mul_i32 {s(S_C0)}, {s(S_J)}, 224")
    w256_dma(A, PZ, 7168, S_C0)
    A(f"s_lshl_b32 {s(S_C0)}, {s(S_J)}, 7")
    w128_dma(A, PQ, 6144, S_C0)
    src2 = lambda stg: dict(x=(SRD_X, 128), z=(SRD_W1, 64*7168), q=(SRD_W2, 64*6144))
    vm = VM()
    p2.prologue_dma(range(3), src2, vm)
    touch_srd(A, ['wsp']*8, [2048*4096]*4 + [0]*4)
    A(f"s_lshl_b32 {s(T_OFF)}, s2, 15")
    A(f"s_lshl_b32 {s(st)}, {s(sw)}, 13")
    A(f"s_add_u32 {s(T_OFF)}, {s(T_OFF)}, {s(st)}")
    A(f"v_lshlrev_b32 {v(V_TO)}, 7, {v(vl)}")
    A(f"buffer_load_dword {v(V_TD)}, {v(V_TO)}, {s(SRD_T,4)}, {s(T_OFF)} offen")
    vm.add('touch')
    issue_root_load(A)
    A(f"s_cmp_eq_u32 {s(S_PATH)}, 1")
    A(f"s_cbranch_scc1 L_z2epi")
    A(f"s_cmp_eq_u32 {s(S_PATH)}, 2")
    A(f"s_cbranch_scc1 L_auxepi")

    f = F1
    WPH = 168; Z = 176; PhiOp = 192; Vop = 208; KV = DEF
    Kop = f; P = f + 4; E = f + 12; AP = f + 28; AN = f + 32; D3 = f + 36
    t0, t1 = f + 52, f + 54; ID = f + 56; ONES = t[2]
    A(f"s_lshl_b32 {s(st)}, {s(S_WN1)}, 11")
    A(f"s_add_u32 {s(st)}, {s(st)}, {PHI}")
    load_wphi(A, WPH, st, t[0], t[1])
    A(f"v_and_b32 {v(t[0])}, 15, {v(vl)}")
    A(f"v_lshrrev_b32 {v(t[1])}, 4, {v(vl)}")
    A(f"v_lshlrev_b32 {v(t[1])}, 2, {v(t[1])}")
    A(f"v_sub_u32 {v(t[0])}, {v(t[0])}, {v(t[1])}")
    A(f"v_mov_b32 {v(t[2])}, 0x3f80")
    A(f"v_mov_b32 {v(t[3])}, 0x3f800000")
    for r in (ID, ID+1, ID+4, ID+5): A(f"v_mov_b32 {v(r)}, 0")
    for r, e0 in ((ID+2, 0), (ID+3, 2)):
        A(f"v_cmp_eq_u32 vcc, {e0}, {v(t[0])}")
        A(f"v_cndmask_b32 {v(r)}, 0, {v(t[2])}, vcc")
        A(f"v_cmp_eq_u32 vcc, {e0+1}, {v(t[0])}")
        A(f"v_cndmask_b32 {v(r)}, {v(r)}, {v(t[3])}, vcc")
    for i in range(4): A(f"v_mov_b32 {v(ONES+i)}, 0x3f803f80")
    A("s_waitcnt lgkmcnt(0)")
    I0, I1 = ID + 2, ID
    for tp in range(2):
        for h in range(2):
            tb = 2*tp + h
            a0, a1 = p1.accb(tb, 0), p1.accb(tb, 1)
            A(f"v_cvt_pk_bf16_f32 {v(Kop)}, {v(a0)}, {v(a0+1)}")
            A(f"v_cvt_pk_bf16_f32 {v(Kop+1)}, {v(a0+2)}, {v(a0+3)}")
            A(f"v_cvt_pk_bf16_f32 {v(Kop+2)}, {v(a1)}, {v(a1+1)}")
            A(f"v_cvt_pk_bf16_f32 {v(Kop+3)}, {v(a1+2)}, {v(a1+3)}")
            mfma16(A, P, WPH, Kop); mfma16(A, P+4, WPH+4, Kop)
            for db in range(2):
                b = p1.accb(tb, 2+db)
                A(f"v_cvt_pk_bf16_f32 {v(Vop+4*db+2*h)}, {v(b)}, {v(b+1)}")
                A(f"v_cvt_pk_bf16_f32 {v(Vop+4*db+2*h+1)}, {v(b+2)}, {v(b+3)}")
            phi(A, P, AP, AN, E, t0, t1, SL)
            mfma16(A, D3, AP, I0); mfma16(A, D3+4, AP, I1); mfma16(A, D3+8, AN, I0); mfma16(A, D3+12, AN, I1)
            for b in range(4):
                A(f"v_cvt_pk_bf16_f32 {v(PhiOp+4*b+2*h)}, {v(D3+4*b)}, {v(D3+4*b+1)}")
                A(f"v_cvt_pk_bf16_f32 {v(PhiOp+4*b+2*h+1)}, {v(D3+4*b+2)}, {v(D3+4*b+3)}")
        for b in range(4):
            for db in range(2):
                d = KV + (b*2+db)*4
                mfma16(A, d, PhiOp+4*b, Vop+4*db, None if tp == 0 else d)
            mfma16(A, Z+4*b, PhiOp+4*b, ONES, None if tp == 0 else Z+4*b)
    stamp(A, 4)
    A("s_barrier")
    XCH = 122880
    vad, vz = t[0], t[1]
    A(f"s_xor_b32 {s(st)}, {s(sw)}, 1")
    A(f"s_lshl_b32 {s(st2)}, {s(st)}, 12")
    A(f"s_add_u32 {s(st2)}, {s(st2)}, {XCH}")
    A(f"v_lshl_add_u32 {v(vad)}, {v(vl)}, 4, {s(st2)}")
    A(f"s_lshl_b32 {s(st2)}, {s(st)}, 7")
    A(f"s_add_u32 {s(st2)}, {s(st2)}, {MISC}")
    A(f"v_and_b32 {v(vz)}, 0x30, {v(vl)}")
    A(f"v_add_u32 {v(vz)}, {s(st2)}, {v(vz)}")
    def zwrite(base):
        A("s_mov_b32 exec_lo, 0x00010001"); A("s_mov_b32 exec_hi, 0x00010001")
        for g_ in range(2): A(f"ds_write_b128 {v(vz)}, {v(base+4*g_,4)} offset:{g_*64}")
        A("s_mov_b64 exec, -1")
    A(f"s_cmp_eq_u32 {s(S_WM)}, 0")
    A(f"s_cbranch_scc0 L_kvs1")
    for g_ in range(4): A(f"ds_write_b128 {v(vad)}, {v(KV+16+4*g_,4)} offset:{g_*1024}")
    zwrite(Z+8)
    A("s_branch L_kvs2")
    A.label("L_kvs1")
    for g_ in range(4): A(f"ds_write_b128 {v(vad)}, {v(KV+4*g_,4)} offset:{g_*1024}")
    zwrite(Z)
    for i in range(0, 16, 2): A(f"v_mov_b64 {v(KV+i,2)}, {v(KV+16+i,2)}")
    for i in range(0, 8, 2): A(f"v_mov_b64 {v(Z+i,2)}, {v(Z+8+i,2)}")
    A.label("L_kvs2")
    A(f"s_lshl_b32 {s(st2)}, {s(sw)}, 12")
    A(f"s_add_u32 {s(st2)}, {s(st2)}, {XCH}")
    A(f"v_lshl_add_u32 {v(vad)}, {v(vl)}, 4, {s(st2)}")
    A(f"s_lshl_b32 {s(st2)}, {s(sw)}, 7")
    A(f"s_add_u32 {s(st2)}, {s(st2)}, {MISC}")
    A(f"v_and_b32 {v(vz)}, 0x30, {v(vl)}")
    A(f"v_add_u32 {v(vz)}, {s(st2)}, {v(vz)}")
    A("s_waitcnt lgkmcnt(0)")
    A("s_barrier")
    for g_ in range(4): A(f"ds_read_b128 {v(KV+16+4*g_,4)}, {v(vad)} offset:{g_*1024}")
    for g_ in range(2): A(f"ds_read_b128 {v(Z+8+4*g_,4)}, {v(vz)} offset:{g_*64}")
    A(f"s_lshl_b32 {s(st3)}, {s(S_CT)}, 2")
    A(f"s_add_u32 {s(st3)}, {s(st3)}, {s(S_WN1)}")
    A(f"s_lshl_b32 {s(st3)}, {s(st3)}, 4")
    A(f"s_add_u32 {s(st3)}, {s(st3)}, {s(S_TB1)}")
    A(f"s_lshl_b32 {s(st)}, {s(st3)}, 13")
    A(f"s_lshl_b32 {s(st2)}, {s(S_WM)}, 12")
    A(f"s_add_u32 {s(st)}, {s(st)}, {s(st2)}")
    A(f"s_add_u32 {s(st)}, {s(st)}, {WS_KVP}")
    A(f"v_lshl_add_u32 {v(VDA)}, {v(vl)}, 4, {s(st)}")
    for i in range(1, 4): A(f"v_add_u32 {v(VDA+i)}, {i*1024}, {v(VDA)}")
    A(f"s_lshl_b32 {s(st)}, {s(st3)}, 8")
    A(f"s_lshl_b32 {s(st2)}, {s(S_WM)}, 7")
    A(f"s_add_u32 {s(st)}, {s(st)}, {s(st2)}")
    A(f"s_add_u32 {s(st)}, {s(st)}, {WS_ZP}")
    A(f"v_and_b32 {v(t[2])}, 0x30, {v(vl)}")
    A(f"v_add_u32 {v(t[2])}, {s(st)}, {v(t[2])}")
    A(f"v_and_b32 {v(t[3])}, 15, {v(vl)}")
    A(f"v_cmp_eq_u32 vcc, 0, {v(t[3])}")
    A(f"v_mov_b32 {v(VDA+6)}, {OOB}")
    A(f"v_mov_b32 {v(VDA+7)}, {OOB}")
    A(f"v_cndmask_b32 {v(VDA+4)}, {v(VDA+6)}, {v(t[2])}, vcc")
    A(f"v_add_u32 {v(VDA+5)}, 64, {v(VDA+4)}")
    wave0_only(A, lambda: wait_root(A))
    A("s_waitcnt lgkmcnt(0)")
    for i in range(0, 16, 2): A(f"v_pk_add_f32 {v(KV+i,2)}, {v(KV+i,2)}, {v(KV+16+i,2)}")
    for i in range(0, 8, 2): A(f"v_pk_add_f32 {v(DEF+16+i,2)}, {v(Z+i,2)}, {v(Z+8+i,2)}")
    A(f"s_lshl_b32 {s(S_PUB)}, {s(S_CT)}, 4")
    A(f"s_add_u32 {s(S_PUB)}, {s(S_PUB)}, {s(S_TB1)}")
    A(f"s_lshl_b32 {s(S_PUB)}, {s(S_PUB)}, 2")
    A(f"s_add_u32 {s(S_PUB)}, {s(S_PUB)}, {F_KVP}")
    A("s_branch L_t23")

    A.label("L_z2epi")
    EX = 168
    sum1 = EX; sum2 = EX + 2; vst = EX + 4; NRM = EX + 8; G = EX + 16; TMP = F1
    s_zt = S_C1
    A(f"s_sub_u32 {s(s_zt)}, {s(S_CT)}, 8")
    A(f"v_mov_b32 {v(VC)}, {hex(f2u(GELU_C2))}")
    A(f"v_mov_b32 {v(VC+1)}, 1.0")
    STL = PHI; NRL = PHI + 4096
    A(f"s_lshl_b32 {s(st)}, {s(S_WN1)}, 7")
    A(f"s_lshl_b32 {s(st2)}, {s(S_WM)}, 6")
    A(f"s_add_u32 {s(st)}, {s(st)}, {s(st2)}")
    A(f"v_and_b32 {v(t[0])}, 15, {v(vl)}")
    A(f"v_add_u32 {v(t[0])}, {s(st)}, {v(t[0])}")
    A(f"v_lshlrev_b32 {v(t[0])}, 1, {v(t[0])}")
    A(f"v_bfe_u32 {v(t[1])}, {v(vl)}, 4, 1")
    A(f"v_add_u32 {v(t[0])}, {v(t[0])}, {v(t[1])}")
    A(f"v_lshlrev_b32 {v(t[0])}, 2, {v(t[0])}")
    A(f"v_add_u32 {v(vst)}, {STL}, {v(t[0])}")
    for tb in range(4):
        b = p1.accb(tb, 0)
        gelu_pk(A, b, 16, TMP + 16*(tb & 1), VC, SC1)
        A(f"v_pk_add_f32 {v(sum1,2)}, {v(b,2)}, {v(b+2,2)}")
        A(f"v_pk_mul_f32 {v(sum2,2)}, {v(b,2)}, {v(b,2)}")
        for i in range(2, 16, 2):
            if i > 2: A(f"v_pk_add_f32 {v(sum1,2)}, {v(sum1,2)}, {v(b+i,2)}")
            A(f"v_pk_fma_f32 {v(sum2,2)}, {v(b+i,2)}, {v(b+i,2)}, {v(sum2,2)}")
        A(f"v_add_f32 {v(sum1)}, {v(sum1)}, {v(sum1+1)}")
        A(f"v_add_f32 {v(sum2)}, {v(sum2)}, {v(sum2+1)}")
        xreduce(A, "v_add_f32", sum1, sum2, full=False)
        A(f"ds_write_b32 {v(vst)}, {v(sum1)} offset:{tb*128}")
    stamp(A, 4)
    A("s_waitcnt lgkmcnt(0)")
    A("s_barrier")
    A(f"s_mul_i32 {s(st3)}, {s(S_TB1)}, {7*1024}")
    A(f"s_add_u32 {s(st3)}, {s(st3)}, {WS_STATS}")
    def gran_store():
        A(f"s_lshl_b32 {s(st)}, {s(sw)}, 6")
        A(f"v_add_u32 {v(t[0])}, {s(st)}, {v(vl)}")
        A(f"v_lshlrev_b32 {v(t[0])}, 3, {v(t[0])}")
        A(f"v_add_u32 {v(t[1])}, {STL}, {v(t[0])}")
        for w in range(4): A(f"ds_read_b64 {v(G+2*w,2)}, {v(t[1])} offset:{w*1024}")
        wait_root(A)
        A("s_waitcnt lgkmcnt(0)")
        A(f"v_pk_add_f32 {v(G,2)}, {v(G,2)}, {v(G+2,2)}")
        A(f"v_pk_add_f32 {v(G+4,2)}, {v(G+4,2)}, {v(G+6,2)}")
        A(f"v_pk_add_f32 {v(G,2)}, {v(G,2)}, {v(G+4,2)}")
        A(f"v_or_b32 {v(G+1)}, 0x80000000, {v(G+1)}")
        A(f"s_lshl_b32 {s(st)}, {s(s_zt)}, 10")
        A(f"s_add_u32 {s(st)}, {s(st)}, {s(st3)}")
        A(f"buffer_store_dwordx2 {v(G,2)}, {v(t[0])}, {s(SRD_WS,4)}, {s(st)} offen{SC}")
    only_waves(A, 0, 2, gran_store)
    def gran_poll():
        A(f"s_sub_u32 {s(st)}, {s(sw)}, 2")
        A(f"s_lshl_b32 {s(st)}, {s(st)}, 6")
        A(f"v_add_u32 {v(t[0])}, {s(st)}, {v(vl)}")
        A(f"v_lshlrev_b32 {v(t[0])}, 3, {v(t[0])}")
        wait_root(A)
        A(f"s_add_u32 {s(st2)}, {s(st3)}, 4096")
        A(f"s_mov_b32 {s(S_SPIN)}, {SPIN_CAP}")
        A.label("L_lnspin")
        for z in range(7):
            so = st3 if z < 4 else st2
            A(f"buffer_load_dwordx2 {v(G+2*z,2)}, {v(t[0])}, {s(SRD_WS,4)}, {s(so)} offen offset:{(z&3)*1024}{SC}")
        A("s_waitcnt vmcnt(0)")
        A(f"v_and_b32 {v(t[2])}, {v(G+1)}, {v(G+3)}")
        for z in range(2, 7): A(f"v_and_b32 {v(t[2])}, {v(t[2])}, {v(G+2*z+1)}")
        A(f"v_cmp_gt_i32 vcc, 0, {v(t[2])}")
        A(f"s_cmp_eq_u64 vcc, -1")
        A(f"s_cbranch_scc1 L_lnok")
        A(f"s_sub_u32 {s(S_SPIN)}, {s(S_SPIN)}, 1")
        A(f"s_cmp_lg_u32 {s(S_SPIN)}, 0")
        A(f"s_cbranch_scc1 L_lnspin")
        A.label("L_lnok")
        dbg_nan(A, G, 12); dbg_nan(A, G+12, 13)
        for z in range(7): A(f"v_and_b32 {v(G+2*z+1)}, 0x7fffffff, {v(G+2*z+1)}")
        for z in range(1, 7): A(f"v_pk_add_f32 {v(G,2)}, {v(G,2)}, {v(G+2*z,2)}")
        A(f"v_mul_f32 {v(t[2])}, {hex(f2u(1.0/1792))}, {v(G)}")
        A(f"v_mul_f32 {v(t[3])}, {hex(f2u(1.0/1792))}, {v(G+1)}")
        A(f"v_fma_f32 {v(t[3])}, -{v(t[2])}, {v(t[2])}, {v(t[3])}")
        A(f"v_max_f32 {v(t[3])}, 0, {v(t[3])}")
        A(f"v_add_f32 {v(t[3])}, {hex(f2u(1e-5))}, {v(t[3])}")
        A(f"v_rsq_f32 {v(G)}, {v(t[3])}")
        A(f"v_mul_f32 {v(G+1)}, {v(t[2])}, {v(G)}")
        A(f"v_add_u32 {v(t[1])}, {NRL}, {v(t[0])}")
        A(f"ds_write_b64 {v(t[1])}, {v(G,2)}")
        A("s_waitcnt lgkmcnt(0)")
    only_waves(A, 2, 4, gran_poll)
    for pr in range(2):
        A(f"s_lshl_b32 {s(st)}, {s(s_zt)}, 5")
        A(f"s_lshl_b32 {s(st2)}, {s(S_WN1)}, 3")
        A(f"s_add_u32 {s(st)}, {s(st)}, {s(st2)}")
        if pr: A(f"s_add_u32 {s(st)}, {s(st)}, 4")
        A(f"v_bfe_u32 {v(t[0])}, {v(vl)}, 4, 1")
        A(f"v_lshrrev_b32 {v(t[1])}, 5, {v(vl)}")
        A(f"v_lshl_add_u32 {v(t[0])}, {v(t[0])}, 1, {v(t[1])}")
        A(f"v_add_u32 {v(t[0])}, {s(st)}, {v(t[0])}")
        A(f"v_mul_u32_u24 {v(t[1])}, 4682, {v(t[0])}")
        A(f"v_lshrrev_b32 {v(t[1])}, 16, {v(t[1])}")
        A(f"v_mul_u32_u24 {v(t[2])}, 14, {v(t[1])}")
        A(f"v_sub_u32 {v(t[0])}, {v(t[0])}, {v(t[2])}")
        A(f"v_mul_u32_u24 {v(t[1])}, {32*14}, {v(t[1])}")
        A(f"v_add_u32 {v(t[0])}, {v(t[0])}, {v(t[1])}")
        A(f"s_lshl_b32 {s(st)}, {s(S_TB1)}, 1")
        A(f"s_add_u32 {s(st)}, {s(st)}, {s(S_WM)}")
        A(f"s_mul_i32 {s(st)}, {s(st)}, 14")
        A(f"v_add_u32 {v(t[0])}, {s(st)}, {v(t[0])}")
        A(f"v_and_b32 {v(t[1])}, 15, {v(vl)}")
        A(f"v_lshlrev_b32 {v(t[1])}, 4, {v(t[1])}")
        A(f"v_lshl_add_u32 {v(VDA+pr)}, {v(t[0])}, 10, {v(t[1])}")
        if WS_Z2N: A(f"v_add_u32 {v(VDA+pr)}, {WS_Z2N}, {v(VDA+pr)}")
        for tb in range(1, 4): A(f"v_add_u32 {v(VDA+2*tb+pr)}, {tb*256}, {v(VDA+pr)}")
    A("s_barrier")
    A(f"s_lshl_b32 {s(st)}, {s(S_WM)}, 9")
    A(f"s_add_u32 {s(st)}, {s(st)}, {NRL}")
    A(f"v_and_b32 {v(t[0])}, 15, {v(vl)}")
    A(f"v_lshl_add_u32 {v(t[0])}, {v(t[0])}, 3, {s(st)}")
    for tb in range(4): A(f"ds_read_b64 {v(NRM+2*tb,2)}, {v(t[0])} offset:{tb*128}")
    A("s_waitcnt lgkmcnt(0)")
    for tb in range(4):
        b = p1.accb(tb, 0)
        for i in range(0, 16, 2):
            A(f"v_pk_fma_f32 {v(b+i,2)}, {v(b+i,2)}, {v(NRM+2*tb,2)}, {v(NRM+2*tb,2)} op_sel:[0,0,1] op_sel_hi:[1,0,1] neg_lo:[0,0,1] neg_hi:[0,0,1]")
        for pr in range(2):
            b0, b1 = p1.accb(tb, 2*pr), p1.accb(tb, 2*pr+1)
            pk = DEF + 4*(2*tb + pr)
            A(f"v_cvt_pk_bf16_f32 {v(pk)}, {v(b0)}, {v(b0+1)}")
            A(f"v_cvt_pk_bf16_f32 {v(pk+1)}, {v(b0+2)}, {v(b0+3)}")
            A(f"v_cvt_pk_bf16_f32 {v(pk+2)}, {v(b1)}, {v(b1+1)}")
            A(f"v_cvt_pk_bf16_f32 {v(pk+3)}, {v(b1+2)}, {v(b1+3)}")
        for pr in range(2):
            pk = DEF + 4*(2*tb + pr)
            A(f"v_permlane16_swap_b32 {v(pk)}, {v(pk+2)}")
            A(f"v_permlane16_swap_b32 {v(pk+1)}, {v(pk+3)}")
    A(f"s_lshl_b32 {s(S_PUB)}, {s(s_zt)}, 4")
    A(f"s_add_u32 {s(S_PUB)}, {s(S_PUB)}, {s(S_TB1)}")
    A(f"s_lshl_b32 {s(S_PUB)}, {s(S_PUB)}, 2")
    A(f"s_add_u32 {s(S_PUB)}, {s(S_PUB)}, {F_Z2}")
    A("s_branch L_t23")

    A.label("L_aux")
    A(f"s_mov_b32 {s(S_PATH)}, 2")
    for i in range(4): A(f"v_mov_b32 {v(ACC+i)}, 0")
    A(f"v_lshlrev_b32 {v(t[0])}, 4, {v(V_PA)}")
    A(f"s_mul_i32 {s(st)}, {s(S_TB1)}, {7*1024}")
    A(f"s_add_u32 {s(st)}, {s(st)}, {WS_STATS}")
    A(f"v_cmp_gt_u32 vcc, {7*1024}, {v(t[0])}")
    A(f"v_mov_b32 {v(t[1])}, {OOB}")
    A(f"v_cndmask_b32 {v(t[1])}, {v(t[1])}, {v(t[0])}, vcc")
    A(f"buffer_store_dwordx4 {v(ACC,4)}, {v(t[1])}, {s(SRD_WS,4)}, {s(st)} offen{SC}")
    A(f"s_lshl_b32 {s(st)}, {s(S_TB1)}, 9")
    A(f"s_add_u32 {s(st)}, {s(st)}, {WS_FLAGS}")
    A(f"v_cmp_gt_u32 vcc, 512, {v(t[0])}")
    A(f"v_mov_b32 {v(t[1])}, {OOB}")
    A(f"v_cndmask_b32 {v(t[1])}, {v(t[1])}, {v(t[0])}, vcc")
    A(f"buffer_store_dwordx4 {v(ACC,4)}, {v(t[1])}, {s(SRD_WS,4)}, {s(st)} offen{SC}")
    A("s_waitcnt vmcnt(0)")
    A("s_barrier")
    phi_loads(False)
    lane_consts()
    def root_add():
        srd(A, SRD_U, 'dbg', 256)
        A(f"v_mov_b32 {v(t[6])}, 1"); A(f"v_mov_b32 {v(t[7])}, 0")
        A("s_mov_b64 exec, 1")
        A(f"buffer_atomic_add {v(t[6])}, {v(t[7])}, {s(SRD_U,4)}, 0 offen")
        A("s_mov_b64 exec, -1")
    wave0_only(A, root_add)
    srd(A, SRD_U, 'gatew', 2048)
    XB, GB, D = ACC, ACC + 64, 168
    A(f"s_lshl_b32 {s(st)}, {s(sw)}, 4")
    A(f"s_lshl_b32 {s(st2)}, {s(S_TB1)}, 7")
    A(f"s_add_u32 {s(st)}, {s(st)}, {s(st2)}")
    A(f"v_and_b32 {v(t[0])}, 15, {v(vl)}")
    A(f"v_add_u32 {v(t[4])}, {s(st)}, {v(t[0])}")
    A(f"v_and_b32 {v(t[2])}, 0x30, {v(vl)}")
    A(f"v_lshl_add_u32 {v(t[1])}, {v(t[4])}, 11, {v(t[2])}")
    for half in range(2):
        for i in range(16):
            A(f"buffer_load_dwordx4 {v(XB+4*i,4)}, {v(t[1])}, {s(SRD_X,4)}, 0 offen offset:{(half*16+i)*64}")
            A(f"buffer_load_dwordx4 {v(GB+4*i,4)}, {v(t[2])}, {s(SRD_U,4)}, 0 offen offset:{(half*16+i)*64}")
        A("s_waitcnt vmcnt(0)")
        for i in range(16):
            mfma16(A, D, GB+4*i, XB+4*i, None if (half == 0 and i == 0) else D)
    A(f"v_mul_f32 {v(DEF)}, {hex(f2u(-LOG2E))}, {v(D)}")
    A(f"v_exp_f32 {v(DEF)}, {v(DEF)}")
    A(f"v_add_f32 {v(DEF)}, 1.0, {v(DEF)}")
    A(f"v_rcp_f32 {v(DEF)}, {v(DEF)}")
    for i in range(1, 4): A(f"v_mov_b32 {v(DEF+i)}, {v(DEF)}")
    A(f"v_lshlrev_b32 {v(t[4])}, 4, {v(t[4])}")
    A(f"v_add_u32 {v(t[4])}, {WS_GATE16}, {v(t[4])}")
    for i in range(1, 8): A(f"v_mov_b32 {v(VDA+i)}, {OOB}")
    A(f"v_cmp_gt_u32 vcc, 16, {v(vl)}")
    A(f"v_cndmask_b32 {v(VDA)}, {v(VDA+1)}, {v(t[4])}, vcc")
    A("s_barrier")
    A("s_branch L_t23pro")
    A.label("L_auxepi")
    wave0_only(A, lambda: wait_root(A))
    A(f"s_lshl_b32 {s(S_PUB)}, {s(S_TB1)}, 2")
    A(f"s_add_u32 {s(S_PUB)}, {s(S_PUB)}, {F_GATE}")

    A.label("L_t23")
    stamp(A, 5)
    A(f"s_mul_i32 {s(st)}, {s(S_J)}, 112")
    A(f"s_lshr_b32 {s(st2)}, {s(st)}, 8")
    A(f"s_add_u32 {s(st)}, {s(st)}, 111")
    A(f"s_lshr_b32 {s(st)}, {s(st)}, 8")
    A(f"v_mov_b32 {v(t[0])}, {s(st2)}")
    A(f"v_mov_b32 {v(t[1])}, {s(st)}")
    A(f"v_cmp_gt_u32 vcc, 16, {v(vl)}")
    A(f"v_cndmask_b32 {v(t[0])}, {v(t[1])}, {v(t[0])}, vcc")
    A(f"v_and_b32 {v(t[1])}, 15, {v(vl)}")
    A(f"v_lshl_add_u32 {v(t[0])}, {v(t[0])}, 4, {v(t[1])}")
    A(f"v_lshlrev_b32 {v(t[0])}, 2, {v(t[0])}")
    A(f"v_add_u32 {v(V_PA)}, {F_Z2}, {v(t[0])}")
    A(f"s_lshr_b32 {s(st)}, s2, 5")
    A(f"s_lshl_b32 {s(st)}, {s(st)}, 6")
    A(f"s_add_u32 {s(st)}, {s(st)}, {F_KVP}")
    A(f"v_lshl_add_u32 {v(t[0])}, {v(t[1])}, 2, {s(st)}")
    A(f"v_cmp_le_u32 vcc, 32, {v(vl)}")
    A(f"v_cndmask_b32 {v(V_PA)}, {v(V_PA)}, {v(t[0])}, vcc")
    A(f"s_lshl_b32 {s(st)}, {s(S_TB)}, 2")
    A(f"s_add_u32 {s(st)}, {s(st)}, {F_GATE}")
    A(f"v_mov_b32 {v(t[0])}, {s(st)}")
    A(f"v_cmp_le_u32 vcc, 48, {v(vl)}")
    A(f"v_cndmask_b32 {v(V_PA)}, {v(V_PA)}, {v(t[0])}, vcc")
    def ex2(k):
        G_ = []
        if k < 8: G_.append(('dst', [f"buffer_store_dwordx4 {v(DEF+4*k,4)}, {v(VDA+k)}, {s(SRD_WS,4)}, 0 offen{SC}"]))
        return G_
    snap = list(vm.ops)
    mark = {}
    def t23(nt):
        def do_poll():
            poll_issue(A); mark['n0'] = len(vm.ops)
        p2.mainloop(16, src2, nt, vm, post={'start': lambda: stamp(A, 6), 10: lambda: publish(A), 13: do_poll}, extra=lambda k: ex2(k) if k < 15 else [])
    A(f"s_cmp_eq_u32 {s(S_WN)}, 0")
    A(f"s_cbranch_scc0 L_t23b")
    p2.wa = [(PZ, wz[0]), (PZ, wz[1]), (PZ, wz[2]), (PZ, wz[3]), (PQ, wq[0]), (PQ, wq[1])]
    t23(6)
    A("s_branch L_t23j")
    A.label("L_t23b")
    vm.ops = list(snap)
    p2.wa = [(PZ, wz[0]), (PZ, wz[1]), (PZ, wz[2]), (PQ, wq[0]), (PQ, wq[1])]
    save = p2.accb
    p2.accb = lambda tb, fb: p2.acc + (tb*6 + (fb if fb < 3 else fb + 1))*4
    t23(5)
    p2.accb = save
    for tb in range(4):
        for i in range(0, 4, 2): A(f"v_mov_b64 {v(p2.accb(tb,3)+i,2)}, 0")
    A.label("L_t23j")
    stamp(A, 7)
    WPH2 = F2
    A(f"s_lshl_b32 {s(st)}, {s(S_WN)}, 11")
    A(f"s_add_u32 {s(st)}, {s(st)}, {PHI2}")
    load_wphi(A, WPH2, st, t[2], t[3])
    poll_check(A, len(vm.ops) - mark['n0'])
    A("s_barrier")

    srd(A, SRD_X, 'wsp', 2048*2048*2)
    srd(A, SRD_W1, 'ws', 16*32*14*1024, off=WS_Z2N)
    setup_m0(A, p4)
    x_dma(A, p4, 4096)
    A(f"s_mul_i32 {s(W1_M0)}, {s(sw)}, {2*1088}")
    A(f"s_add_u32 {s(W1_M0)}, {s(W1_M0)}, {PW4.base}")
    A(f"s_mul_i32 {s(W1_OFF)}, {s(S_J)}, {32*14*1024}")
    A(f"s_lshl_b32 {s(st)}, {s(sw)}, 11")
    A(f"s_add_u32 {s(W1_OFF)}, {s(W1_OFF)}, {s(st)}")
    A(f"v_lshlrev_b32 {v(PW4.vo[0])}, 4, {v(vl)}")
    A(f"s_cmp_eq_u32 {s(sw)}, 7")
    A(f"s_cselect_b32 {s(st)}, {OOB}, 0")
    A(f"s_cselect_b32 {s(W1_M0)}, 163840, {s(W1_M0)}")
    A(f"v_add_u32 {v(PW4.vo[0])}, {s(st)}, {v(PW4.vo[0])}")
    A(f"v_mov_b32 {v(PW4.vo[1])}, {v(PW4.vo[0])}")
    src4 = lambda stg: dict(x=(SRD_X, 128), w=(SRD_W1, 14*1024))
    vm = VM()
    p4.prologue_dma([0], src4, vm)
    touch_srd(A, ['wo', 'wout', 'wout'] + ['wo']*5, [1024*2048, 1792*2048, 1792*2048, 0, 0, 0, 0, 0])
    sel_by_wave(A, T_STEP, [64*128, 112*128, 112*128, 0, 0, 0, 0, 0])
    A(f"s_mul_i32 {s(T_OFF)}, {s(T_STEP)}, s2")
    A(f"s_cmp_eq_u32 {s(sw)}, 2")
    A(f"s_cselect_b32 {s(st)}, {64*128}, 0")
    A(f"s_add_u32 {s(T_OFF)}, {s(T_OFF)}, {s(st)}")
    sel_by_wave(A, st, [63, 63, 47, 0, 0, 0, 0, 0])
    A(f"v_min_u32 {v(t[0])}, {s(st)}, {v(vl)}")
    A(f"v_lshlrev_b32 {v(V_TO)}, 7, {v(t[0])}")
    A(f"buffer_load_dword {v(V_TD)}, {v(V_TO)}, {s(SRD_T,4)}, {s(T_OFF)} offen")
    vm.add('touch')
    RED = F2 + 8
    A(f"s_lshr_b32 {s(st)}, s2, 3")
    A(f"s_lshl_b32 {s(st)}, {s(st)}, 17")
    A(f"s_and_b32 {s(st2)}, s2, 7")
    A(f"s_lshl_b32 {s(st2)}, {s(st2)}, 10")
    A(f"s_add_u32 {s(st)}, {s(st)}, {s(st2)}")
    A(f"s_lshl_b32 {s(st2)}, {s(sw)}, 14")
    A(f"s_add_u32 {s(st)}, {s(st)}, {s(st2)}")
    A(f"s_add_u32 {s(st)}, {s(st)}, {WS_KVP}")
    A(f"v_lshlrev_b32 {v(t[1])}, 4, {v(vl)}")
    A(f"buffer_load_dwordx4 {v(RED,4)}, {v(t[1])}, {s(SRD_WS,4)}, {s(st)} offen{SC}")
    A(f"s_add_u32 {s(st)}, {s(st)}, 8192")
    A(f"buffer_load_dwordx4 {v(RED+4,4)}, {v(t[1])}, {s(SRD_WS,4)}, {s(st)} offen{SC}")
    A(f"s_lshr_b32 {s(st)}, s2, 3")
    A(f"s_lshl_b32 {s(st)}, {s(st)}, 12")
    A(f"s_lshl_b32 {s(st2)}, {s(sw)}, 9")
    A(f"s_add_u32 {s(st)}, {s(st)}, {s(st2)}")
    A(f"s_add_u32 {s(st)}, {s(st)}, {WS_ZP}")
    A(f"v_lshlrev_b32 {v(t[1])}, 2, {v(vl)}")
    A(f"buffer_load_dword {v(RED+8)}, {v(t[1])}, {s(SRD_WS,4)}, {s(st)} offen{SC}")
    A(f"buffer_load_dword {v(RED+9)}, {v(t[1])}, {s(SRD_WS,4)}, {s(st)} offen offset:256{SC}")
    A(f"s_lshl_b32 {s(st)}, {s(S_WM)}, 6")
    A(f"s_lshl_b32 {s(st2)}, {s(S_WK)}, 5")
    A(f"s_add_u32 {s(st)}, {s(st)}, {s(st2)}")
    A(f"s_add_u32 {s(st)}, {s(st)}, {s(S_ROW0)}")
    A(f"v_and_b32 {v(VTOK)}, 15, {v(vl)}")
    A(f"v_add_u32 {v(VTOK)}, {s(st)}, {v(VTOK)}")
    A(f"v_lshlrev_b32 {v(t[2])}, 4, {v(VTOK)}")
    A(f"s_mov_b32 {s(st)}, {WS_GATE16}")
    A(f"buffer_load_dword {v(VG)}, {v(t[2])}, {s(SRD_WS,4)}, {s(st)} offen{SC}")
    A(f"buffer_load_dword {v(VG+1)}, {v(t[2])}, {s(SRD_WS,4)}, {s(st)} offen offset:256{SC}")
    srd(A, SRD_U, 'bsp', 4096)
    A(f"v_lshlrev_b32 {v(t[2])}, 1, {v(VTOK)}")
    A(f"buffer_load_ushort {v(VB)}, {v(t[2])}, {s(SRD_U,4)}, 0 offen")
    A(f"buffer_load_ushort {v(VB+1)}, {v(t[2])}, {s(SRD_U,4)}, 0 offen offset:32")
    vm.add('misc', 8)
    def slot23(d, w):
        A(f"s_mul_i32 {s(d)}, {s(w)}, 12288")
        A(f"s_add_u32 {s(d)}, {s(d)}, 16384")
        A(f"s_cmp_ge_u32 {s(w)}, 4")
        A(f"s_cselect_b32 {s(ST3)}, 16384, 0")
        A(f"s_add_u32 {s(d)}, {s(d)}, {s(ST3)}")
    fin = exchange(A, "x23", ACC, 48, slot23, first_barrier=False)
    fin()
    A("s_barrier")
    p4.prologue_dma([1, 2, 3], src4, vm)
    A(f"v_lshrrev_b32 {v(t[0])}, 4, {v(vl)}")
    A(f"v_lshlrev_b32 {v(t[0])}, 3, {v(t[0])}")
    A(f"v_bfe_u32 {v(t[1])}, {v(vl)}, 2, 2")
    A(f"v_add_u32 {v(t[0])}, {v(t[0])}, {v(t[1])}")
    A(f"s_lshl_b32 {s(st)}, {s(S_WK)}, 5")
    A(f"v_add_u32 {v(t[0])}, {s(st)}, {v(t[0])}")
    A(f"v_lshlrev_b32 {v(t[0])}, 4, {v(t[0])}")
    A(f"v_and_b32 {v(t[1])}, 1, {v(vl)}")
    A(f"v_lshl_add_u32 {v(t[0])}, {v(t[1])}, 3, {v(t[0])}")
    A(f"v_bfe_u32 {v(t[1])}, {v(vl)}, 1, 1")
    A(f"v_mul_u32_u24 {v(t[1])}, 1088, {v(t[1])}")
    A(f"v_add_u32 {v(t[0])}, {v(t[0])}, {v(t[1])}")
    A(f"s_mul_i32 {s(st)}, {s(S_WN)}, {8*1088}")
    A(f"s_add_u32 {s(st)}, {s(st)}, {PW4.base}")
    A(f"v_add_u32 {v(WZ)}, {s(st)}, {v(t[0])}")

    Z1 = DEF; APN = DEF + 16
    f = F2
    A(f"v_mov_b32 {v(VC)}, {hex(f2u(GELU_C2))}")
    A(f"v_mov_b32 {v(VC+1)}, 1.0")
    for tp in range(2):
        b = p2.accb(tp, 0)
        gelu_pk(A, b, 16, f + 24 + 16*tp, VC, SC1)
        for fb in range(4):
            bb = p2.accb(tp, fb)
            A(f"v_cvt_pk_bf16_f32 {v(Z1+tp*8+fb*2)}, {v(bb)}, {v(bb+1)}")
            A(f"v_cvt_pk_bf16_f32 {v(Z1+tp*8+fb*2+1)}, {v(bb+2)}, {v(bb+3)}")
    REDL = PHI
    A(f"s_waitcnt vmcnt({vm.after('misc')})")
    dbg_nan(A, VG, 1); dbg_nan(A, RED, 2); dbg_nan(A, RED+8, 3)
    A(f"v_pk_add_f32 {v(RED,2)}, {v(RED,2)}, {v(RED+4,2)}")
    A(f"v_pk_add_f32 {v(RED+2,2)}, {v(RED+2,2)}, {v(RED+6,2)}")
    A(f"v_add_f32 {v(RED+8)}, {v(RED+8)}, {v(RED+9)}")
    A(f"s_lshl_b32 {s(st)}, {s(sw)}, 10")
    A(f"s_add_u32 {s(st)}, {s(st)}, {REDL}")
    A(f"v_lshl_add_u32 {v(t[0])}, {v(vl)}, 4, {s(st)}")
    A(f"ds_write_b128 {v(t[0])}, {v(RED,4)}")
    A(f"s_lshl_b32 {s(st)}, {s(sw)}, 8")
    A(f"s_add_u32 {s(st)}, {s(st)}, {MISC}")
    A(f"v_lshl_add_u32 {v(t[0])}, {v(vl)}, 2, {s(st)}")
    A(f"ds_write_b32 {v(t[0])}, {v(RED+8)}")
    Qop = f + 56; P = f + 60; E = f + 24; t0, t1 = f + 68, f + 70
    def qphi(tp):
        a0, a1 = p2.accb(tp, 4), p2.accb(tp, 5)
        A(f"v_cvt_pk_bf16_f32 {v(Qop)}, {v(a0)}, {v(a0+1)}")
        A(f"v_cvt_pk_bf16_f32 {v(Qop+1)}, {v(a0+2)}, {v(a0+3)}")
        A(f"v_cvt_pk_bf16_f32 {v(Qop+2)}, {v(a1)}, {v(a1+1)}")
        A(f"v_cvt_pk_bf16_f32 {v(Qop+3)}, {v(a1+2)}, {v(a1+3)}")
        mfma16(A, P, WPH2, Qop); mfma16(A, P+4, WPH2+4, Qop)
        phi(A, P, APN+8*tp, APN+8*tp+4, E, t0, t1, SL)
    qphi(0)
    A("s_waitcnt lgkmcnt(0)")
    A("s_barrier")
    R8 = ACC + 48
    def red_kv():
        A(f"v_lshlrev_b32 {v(t[0])}, 4, {v(vl)}")
        A(f"v_add_u32 {v(t[1])}, {REDL}, {v(t[0])}")
        for w in range(8): A(f"ds_read_b128 {v(R8+4*w,4)}, {v(t[1])} offset:{w*1024}")
        A("s_waitcnt lgkmcnt(0)")
        for w in range(1, 8):
            A(f"v_pk_add_f32 {v(R8,2)}, {v(R8,2)}, {v(R8+4*w,2)}")
            A(f"v_pk_add_f32 {v(R8+2,2)}, {v(R8+2,2)}, {v(R8+4*w+2,2)}")
        A(f"v_cvt_pk_bf16_f32 {v(R8)}, {v(R8)}, {v(R8+1)}")
        A(f"v_cvt_pk_bf16_f32 {v(R8+1)}, {v(R8+2)}, {v(R8+3)}")
        A(f"s_and_b32 {s(st3)}, s2, 7")
        A(f"s_lshr_b32 {s(st)}, {s(st3)}, 2")
        A(f"s_lshl_b32 {s(st)}, {s(st)}, 1")
        A(f"s_and_b32 {s(st2)}, {s(st3)}, 1")
        A(f"s_add_u32 {s(st)}, {s(st)}, {s(st2)}")
        A(f"s_lshl_b32 {s(st)}, {s(st)}, 10")
        A(f"s_bfe_u32 {s(st2)}, {s(st3)}, 0x10001")
        A(f"s_lshl_b32 {s(st2)}, {s(st2)}, 3")
        A(f"s_add_u32 {s(st)}, {s(st)}, {s(st2)}")
        A(f"s_lshr_b32 {s(st2)}, s2, 3")
        A(f"s_lshl_b32 {s(st2)}, {s(st2)}, 12")
        A(f"s_add_u32 {s(st)}, {s(st)}, {s(st2)}")
        A(f"s_add_u32 {s(st)}, {s(st)}, {WS_KVR}")
        A(f"buffer_store_dwordx2 {v(R8,2)}, {v(t[0])}, {s(SRD_WS,4)}, {s(st)} offen{SC}")
    only_waves(A, 0, 1, red_kv)
    def red_z():
        lab = A.newlabel("nz")
        A(f"s_and_b32 {s(st)}, s2, 7")
        A(f"s_cmp_lg_u32 {s(st)}, 0")
        A(f"s_cbranch_scc1 {lab}")
        A(f"v_lshlrev_b32 {v(t[0])}, 2, {v(vl)}")
        A(f"v_add_u32 {v(t[1])}, {MISC}, {v(t[0])}")
        for w in range(8): A(f"ds_read_b32 {v(R8+w)}, {v(t[1])} offset:{w*256}")
        A("s_waitcnt lgkmcnt(0)")
        for w in range(1, 8): A(f"v_add_f32 {v(R8)}, {v(R8)}, {v(R8+w)}")
        A(f"v_cvt_pk_bf16_f32 {v(R8)}, {v(R8)}, {v(R8)}")
        A(f"v_lshrrev_b32 {v(t[1])}, 5, {v(vl)}")
        A(f"v_lshlrev_b32 {v(t[1])}, 6, {v(t[1])}")
        A(f"v_bfe_u32 {v(t[2])}, {v(vl)}, 2, 2")
        A(f"v_lshl_add_u32 {v(t[1])}, {v(t[2])}, 4, {v(t[1])}")
        A(f"v_bfe_u32 {v(t[2])}, {v(vl)}, 4, 1")
        A(f"v_lshl_add_u32 {v(t[1])}, {v(t[2])}, 3, {v(t[1])}")
        A(f"v_and_b32 {v(t[2])}, 3, {v(vl)}")
        A(f"v_lshl_add_u32 {v(t[1])}, {v(t[2])}, 1, {v(t[1])}")
        A(f"s_lshr_b32 {s(st)}, s2, 3")
        A(f"s_lshl_b32 {s(st)}, {s(st)}, 7")
        A(f"s_add_u32 {s(st)}, {s(st)}, {WS_ZR}")
        A(f"buffer_store_short {v(R8)}, {v(t[1])}, {s(SRD_WS,4)}, {s(st)} offen{SC}")
        A.label(lab)
    only_waves(A, 1, 2, red_z)
    qphi(1)
    A(f"s_lshl_b32 {s(S_PUB)}, s2, 2")
    A(f"s_add_u32 {s(S_PUB)}, {s(S_PUB)}, {F_KVR}")
    A(f"s_lshl_b32 {s(st)}, {s(S_J)}, 6")
    A(f"s_add_u32 {s(st)}, {s(st)}, {F_KVR}")
    A(f"v_and_b32 {v(t[0])}, 15, {v(vl)}")
    A(f"v_lshl_add_u32 {v(V_PA)}, {v(t[0])}, 2, {s(st)}")
    stamp(A, 8)

    KVO, ZO, O, DN, PKo, tt = 168, 184, 192, 200, 204, 212
    snap = list(vm.ops)
    def t4(nt):
        mk = {}
        def do_poll():
            poll_issue(A); mk['n0'] = len(vm.ops)
        def chk():
            poll_check(A, len(vm.ops) - mk['n0'])
        def load_kv():
            A(f"s_lshl_b32 {s(st2)}, {s(S_J)}, 1")
            A(f"s_add_u32 {s(st2)}, {s(st2)}, {s(S_WN)}")
            A(f"s_lshl_b32 {s(st)}, {s(st2)}, 12")
            A(f"s_add_u32 {s(st)}, {s(st)}, {WS_KVR}")
            A(f"v_lshlrev_b32 {v(t[0])}, 4, {v(vl)}")
            for i in range(4):
                A(f"buffer_load_dwordx4 {v(KVO+4*i,4)}, {v(t[0])}, {s(SRD_WS,4)}, {s(st)} offen offset:{i*1024}{SC}")
            A(f"s_lshl_b32 {s(st)}, {s(st2)}, 7")
            A(f"s_add_u32 {s(st)}, {s(st)}, {WS_ZR}")
            A(f"v_and_b32 {v(t[0])}, 0x30, {v(vl)}")
            for i in range(2):
                A(f"buffer_load_dwordx4 {v(ZO+4*i,4)}, {v(t[0])}, {s(SRD_WS,4)}, {s(st)} offen offset:{i*64}{SC}")
            vm.add('kvo', 6)
        p4.mainloop(32, src4, nt, vm, k0=0, k1=16, post={'start': lambda: stamp(A, 9), 3: lambda: publish(A), 8: do_poll, 12: load_kv}, pre={11: chk}, final=False)
        stamp(A, 10)
        A(f"s_waitcnt vmcnt({vm.after('kvo')})")
        dbg_nan(A, KVO, 14); dbg_nan(A, ZO, 15)
        A(f"s_lshl_b32 {s(st2)}, {s(S_J)}, 1")
        A(f"s_add_u32 {s(st2)}, {s(st2)}, {s(S_WN)}")
        A(f"s_lshl_b32 {s(st2)}, {s(st2)}, 2")
        A(f"v_bfe_u32 {v(t[0])}, {v(vl)}, 4, 1")
        A(f"v_lshrrev_b32 {v(t[1])}, 5, {v(vl)}")
        A(f"v_lshl_add_u32 {v(t[0])}, {v(t[0])}, 1, {v(t[1])}")
        A(f"v_add_u32 {v(t[0])}, {s(st2)}, {v(t[0])}")
        A(f"v_and_b32 {v(t[1])}, 127, {v(VTOK)}")
        A(f"v_lshlrev_b32 {v(t[1])}, 4, {v(t[1])}")
        A(f"v_lshl_add_u32 {v(VA0)}, {v(t[0])}, 11, {v(t[1])}")
        A(f"s_mul_i32 {s(st)}, {s(S_TB)}, {44*16384}")
        A(f"v_add_u32 {v(VA0)}, {s(st)}, {v(VA0)}")
        for tp in range(2):
            AP_, AN_ = APN + 8*tp, APN + 8*tp + 4
            for db in range(2): mfma16(A, O+4*db, KVO+4*db, AP_)
            mfma16(A, DN, ZO, AP_)
            for db in range(2): mfma16(A, O+4*db, KVO+8+4*db, AN_, O+4*db)
            mfma16(A, DN, ZO+4, AN_, DN)
            A(f"v_add_f32 {v(tt)}, {hex(f2u(1e-6))}, {v(DN)}")
            A(f"v_rcp_f32 {v(tt)}, {v(tt)}")
            A(f"v_mul_f32 {v(tt)}, {v(tt)}, {v(VG+tp)}")
            for i in range(0, 8, 2): A(f"v_pk_mul_f32 {v(O+i,2)}, {v(O+i,2)}, {v(tt,2)} op_sel_hi:[1,0]")
            pk = PKo + 4*tp
            for i in range(4): A(f"v_cvt_pk_bf16_f32 {v(pk+i)}, {v(O+2*i)}, {v(O+2*i+1)}")
            A(f"v_permlane16_swap_b32 {v(pk)}, {v(pk+2)}")
            A(f"v_permlane16_swap_b32 {v(pk+1)}, {v(pk+3)}")
            A(f"s_mov_b32 {s(st)}, {WS_OH + tp*256}")
            A(f"buffer_store_dwordx4 {v(pk,4)}, {v(VA0)}, {s(SRD_WS,4)}, {s(st)} offen{SC}")
            vm.add('ost')
        A(f"s_lshl_b32 {s(st)}, {s(S_TB)}, 6")
        A(f"s_add_u32 {s(st)}, {s(st)}, {F_O}")
        A(f"v_and_b32 {v(t[0])}, 15, {v(vl)}")
        A(f"v_lshl_add_u32 {v(V_PA)}, {v(t[0])}, 2, {s(st)}")
        A(f"s_lshl_b32 {s(S_PUB)}, {s(S_J)}, 2")
        A(f"s_add_u32 {s(S_PUB)}, {s(S_PUB)}, {s(st)}")
        stamp(A, 11)
        p4.mainloop(32, src4, nt, vm, k0=16, k1=32, post={19: lambda: publish(A), 27: do_poll})
        return mk
    A(f"s_cmp_eq_u32 {s(S_WN)}, 0")
    A(f"s_cbranch_scc0 L_t4b")
    mk = t4(4)
    endops = list(vm.ops)
    A("s_branch L_t4j")
    A.label("L_t4b")
    vm.ops = list(snap)
    mk = t4(3)
    assert vm.ops == endops
    for tb in range(4):
        for i in range(0, 4, 2): A(f"v_mov_b64 {v(p4.accb(tb,3)+i,2)}, 0")
    A.label("L_t4j")
    stamp(A, 12)
    poll_check(A, len(vm.ops) - mk['n0'])
    A("s_barrier")

    srd(A, SRD_X, 'ws', 16*44*16384, off=WS_OH)
    srd(A, SRD_W1, 'wo', 1024*1024*2)
    setup_m0(A, p5)
    A(f"s_mul_i32 {s(SX_OFF)}, {s(S_TB)}, {44*16384}")
    A(f"s_lshl_b32 {s(st)}, {s(sw)}, 11")
    A(f"s_add_u32 {s(SX_OFF)}, {s(SX_OFF)}, {s(st)}")
    A(f"v_lshlrev_b32 {v(p5.xv[0])}, 4, {v(vl)}")
    A(f"v_mov_b32 {v(p5.xv[1])}, {v(p5.xv[0])}")
    A(f"s_lshl_b32 {s(S_C0)}, {s(S_J)}, 7")
    w128_dma(A, PW5, 2048, S_C0)
    src5 = lambda stg: dict(x=(SRD_X, 16384), w=(SRD_W1, 64*2048))
    vm = VM()
    p5.prologue_dma([0, 1], src5, vm)
    def slot4(d, w):
        A(f"s_lshl_b32 {s(d)}, {s(w)}, 13")
        A(f"s_add_u32 {s(d)}, {s(d)}, 32768")
    fin = exchange(A, "x4", ACC, 32, slot4, first_barrier=False)
    fin()
    A("s_barrier")
    p5.prologue_dma([2, 3, 4, 5], src5, vm)
    A(f"v_lshrrev_b32 {v(t[0])}, 4, {v(vl)}")
    A(f"s_lshl_b32 {s(st)}, {s(S_WK)}, 2")
    A(f"v_add_u32 {v(t[0])}, {s(st)}, {v(t[0])}")
    A(f"v_and_b32 {v(t[1])}, 15, {v(vl)}")
    A(f"s_lshl_b32 {s(st)}, {s(S_WM)}, 6")
    A(f"v_add_u32 {v(t[1])}, {s(st)}, {v(t[1])}")
    A(f"v_lshlrev_b32 {v(t[1])}, 4, {v(t[1])}")
    A(f"v_lshl_add_u32 {v(XA2)}, {v(t[0])}, 11, {v(t[1])}")
    A(f"v_add_u32 {v(XAW)}, 65536, {v(XA2)}")
    DH, VDH = 168, 184
    U = 192; vsc = 196; vb = 198
    A(f"s_mul_i32 {s(st)}, {s(S_J)}, 14")
    A(f"s_lshl_b32 {s(st2)}, {s(S_WN)}, 3")
    A(f"s_add_u32 {s(st)}, {s(st)}, {s(st2)}")
    A(f"s_add_u32 {s(st)}, {s(st)}, 128")
    A(f"v_bfe_u32 {v(t[1])}, {v(vl)}, 4, 1")
    A(f"v_lshrrev_b32 {v(t[0])}, 5, {v(vl)}")
    A(f"v_lshl_add_u32 {v(t[0])}, {v(t[1])}, 1, {v(t[0])}")
    A(f"v_add_u32 {v(t[0])}, {s(st)}, {v(t[0])}")
    A(f"v_and_b32 {v(t[2])}, 127, {v(VTOK)}")
    A(f"v_lshlrev_b32 {v(t[2])}, 4, {v(t[2])}")
    A(f"v_lshl_add_u32 {v(VDH)}, {v(t[0])}, 11, {v(t[2])}")
    A(f"s_mul_i32 {s(st)}, {s(S_TB)}, {44*16384}")
    A(f"s_add_u32 {s(st)}, {s(st)}, {WS_OH}")
    A(f"v_add_u32 {v(VDH)}, {s(st)}, {v(VDH)}")
    A(f"v_add_u32 {v(VDH+1)}, {4*2048}, {v(VDH)}")
    A(f"v_mul_lo_u32 {v(t[1])}, {v(t[1])}, {s(S_WN)}")
    A(f"v_cmp_eq_u32 vcc, 1, {v(t[1])}")
    A(f"v_mov_b32 {v(t[2])}, {OOB}")
    A(f"v_cndmask_b32 {v(VDH+1)}, {v(VDH+1)}, {v(t[2])}, vcc")
    A(f"v_add_u32 {v(VDH+2)}, 256, {v(VDH)}")
    A(f"v_add_u32 {v(VDH+3)}, 256, {v(VDH+1)}")
    for tp in range(2):
        A(f"v_lshlrev_b32 {v(vb)}, 16, {v(VB+tp)}")
        A(f"v_sub_f32 {v(vsc)}, 1.0, {v(VG+tp)}")
        for fb in range(4):
            b = p4.accb(tp, fb)
            z = Z1 + tp*8 + fb*2
            A(f"v_lshlrev_b32 {v(U)}, 16, {v(z)}")
            A(f"v_and_b32 {v(U+1)}, 0xffff0000, {v(z)}")
            A(f"v_lshlrev_b32 {v(U+2)}, 16, {v(z+1)}")
            A(f"v_and_b32 {v(U+3)}, 0xffff0000, {v(z+1)}")
            for i in (0, 2): A(f"v_pk_add_f32 {v(b+i,2)}, {v(b+i,2)}, {v(vb,2)} op_sel_hi:[1,0]")
            for i in (0, 2): A(f"v_pk_mul_f32 {v(U+i,2)}, {v(U+i,2)}, {v(vsc,2)} op_sel_hi:[1,0]")
            for i in (0, 2): A(f"v_pk_mul_f32 {v(b+i,2)}, {v(b+i,2)}, {v(U+i,2)}")
        for pr in range(2):
            b0, b1 = p4.accb(tp, 2*pr), p4.accb(tp, 2*pr+1)
            pk = DH + 4*(2*tp + pr)
            A(f"v_cvt_pk_bf16_f32 {v(pk)}, {v(b0)}, {v(b0+1)}")
            A(f"v_cvt_pk_bf16_f32 {v(pk+1)}, {v(b0+2)}, {v(b0+3)}")
            A(f"v_cvt_pk_bf16_f32 {v(pk+2)}, {v(b1)}, {v(b1+1)}")
            A(f"v_cvt_pk_bf16_f32 {v(pk+3)}, {v(b1+2)}, {v(b1+3)}")
        for pr in range(2):
            pk = DH + 4*(2*tp + pr)
            A(f"v_permlane16_swap_b32 {v(pk)}, {v(pk+2)}")
            A(f"v_permlane16_swap_b32 {v(pk+1)}, {v(pk+3)}")
    for i in range(4):
        A(f"buffer_store_dwordx4 {v(DH+4*i,4)}, {v(VDH+i)}, {s(SRD_WS,4)}, 0 offen{SC}")
        vm.add('hst')
    A(f"s_lshl_b32 {s(st)}, {s(S_TB)}, 6")
    A(f"s_add_u32 {s(st)}, {s(st)}, {F_H}")
    A(f"v_and_b32 {v(t[0])}, 15, {v(vl)}")
    A(f"v_lshl_add_u32 {v(V_PA)}, {v(t[0])}, 2, {s(st)}")
    A(f"s_lshl_b32 {s(S_PUB)}, {s(S_J)}, 2")
    A(f"s_add_u32 {s(S_PUB)}, {s(S_PUB)}, {s(st)}")
    mk5 = {}
    def wait_h(): A(f"s_waitcnt vmcnt({vm.after('hst')})")
    def poll5(): poll_issue(A); mk5['n0'] = len(vm.ops)
    def chk5(): poll_check(A, len(vm.ops) - mk5['n0'])
    def to_wout():
        srd(A, SRD_W1, 'wout', 1792*1024*2)
        A(f"s_mul_i32 {s(W1_OFF)}, {s(sw)}, {8*2048}")
        A(f"s_add_u32 {s(W1_OFF)}, {s(W1_OFF)}, {s(S_C0)}")
    p5.mainloop(44, src5, 2, vm, pre={3: wait_h, 9: chk5}, post={'start': lambda: stamp(A, 13), 3: lambda: publish(A), 7: poll5}, switch={16: to_wout})
    stamp(A, 14)
    def slot5(d, w): A(f"s_lshl_b32 {s(d)}, {s(w)}, 12")
    fin = exchange(A, "x5", ACC, 16, slot5, first_barrier=True)
    srd(A, SRD_U, 'out', 2048*1024*2)
    vo = t[4]
    A(f"v_lshlrev_b32 {v(vo)}, 11, {v(VTOK)}")
    A(f"s_lshl_b32 {s(st)}, {s(S_WN)}, 6")
    A(f"s_add_u32 {s(st)}, {s(st)}, {s(S_C0)}")
    A(f"v_add_u32 {v(vo)}, {s(st)}, {v(vo)}")
    A(f"v_bfe_u32 {v(t[1])}, {v(vl)}, 4, 1")
    A(f"v_lshl_add_u32 {v(vo)}, {v(t[1])}, 5, {v(vo)}")
    A(f"v_lshrrev_b32 {v(t[1])}, 5, {v(vl)}")
    A(f"v_lshl_add_u32 {v(vo)}, {v(t[1])}, 4, {v(vo)}")
    fin()
    for tp in range(2):
        b0, b1 = p5.accb(tp, 0), p5.accb(tp, 1)
        pk = F5 + 4*tp
        A(f"v_cvt_pk_bf16_f32 {v(pk)}, {v(b0)}, {v(b0+1)}")
        A(f"v_cvt_pk_bf16_f32 {v(pk+1)}, {v(b0+2)}, {v(b0+3)}")
        A(f"v_cvt_pk_bf16_f32 {v(pk+2)}, {v(b1)}, {v(b1+1)}")
        A(f"v_cvt_pk_bf16_f32 {v(pk+3)}, {v(b1+2)}, {v(b1+3)}")
        A(f"v_permlane16_swap_b32 {v(pk)}, {v(pk+2)}")
        A(f"v_permlane16_swap_b32 {v(pk+1)}, {v(pk+3)}")
        A(f"s_mov_b32 {s(st)}, {tp*16*2048}")
        A(f"buffer_store_dwordx4 {v(pk,4)}, {v(vo)}, {s(SRD_U,4)}, {s(st)} offen")
    if STAMPS:
        A("s_waitcnt vmcnt(0)")
        stamp(A, 15)
    A.label(END)
    A("s_endpgm")
    A.lines.append(kernel_desc(NAME, 256, 0, NSGPR))
    return A

HEADER = open("gated_mix__linear_kernel_hedgehog__mixer_gmlp__prompt.s.ref").read().split("; Override launch")[0]
def build(stamps=False, dbg=False):
    A = gen(stamps, dbg)
    lines = fix(A.lines)
    head = HEADER + "; @launch grid=(256,1,1) block=(512,1,1) lds=163840\n" + '.amdgcn_target "amdgcn-amd-amdhsa--gfx950"\n'
    return head + "\n".join(lines) + "\n"

if __name__ == "__main__":
    out = sys.argv[1]
    open(out, "w").write(build('ts' in sys.argv[2:], 'dbg' in sys.argv[2:]))
```
